```python
import torch

def _softmax(x, axis=-1):
    return torch.softmax(x, dim=axis)

def _gelu(x):
    return torch.nn.functional.gelu(x, approximate='tanh')

def _silu(x):
    return torch.nn.functional.silu(x)

def _sigmoid(x):
    return torch.sigmoid(x)

def _layernorm(x, axis=-1, eps=1e-05):
    m = x.mean(dim=axis, keepdim=True)
    v = x.var(dim=axis, keepdim=True, unbiased=False)
    return (x - m) / torch.sqrt(v + eps)

def _scatter_add(tgt, idx, src, axis=0):
    return tgt.clone().index_add_(axis, idx, src)

def _segment_sum(src, seg, n):
    out = torch.zeros((n,) + src.shape[1:], dtype=src.dtype)
    return out.index_add_(0, seg, src)

def _pad(x, pw):
    flat = tuple((v for pair in reversed(pw) for v in pair))
    return torch.nn.functional.pad(x, flat)
kernel_name = 'adaLN_cond__mha_block_cached__swiglu_ffn__prompt'

def setup_inputs():

    _w = lambda a: (lambda t: t.to(torch.bfloat16) if t.is_floating_point() else t)(torch.as_tensor(a))

    def _A_setup():
        B, Sq, D = (1, 2048, 1024)
        H, Sk, Dh = (32, 2048, 128)
        return {'x': _w((lambda *s: torch.randn(*s, dtype=torch.bfloat16) * 0.05)(B, Sq, D)), 'k_cache': _w((lambda *s: torch.randn(*s, dtype=torch.bfloat16) * 3.2)(B, H, Sk, Dh)), 'v_cache': _w((lambda *s: torch.randn(*s, dtype=torch.bfloat16) * 0.4)(B, H, Sk, Dh)), 'wq': _w((lambda *s: torch.randn(*s, dtype=torch.bfloat16) * 3.2)(D, H * Dh) * D ** (-0.5)), 'wo': _w((lambda *s: torch.randn(*s, dtype=torch.bfloat16) * 0.4)(H * Dh, D) * (H * Dh) ** (-0.5))}
    _A_in = _A_setup()

    def _B_setup():
        B, S, D, F = (1, 2048, 1024, 3584)
        return {'x': _w((lambda *s: torch.randn(*s, dtype=torch.bfloat16) * 0.05)(B, S, D)), 'w_gate': _w((lambda *s: torch.randn(*s, dtype=torch.bfloat16) * 0.05)(D, F)), 'w_up': _w((lambda *s: torch.randn(*s, dtype=torch.bfloat16) * 0.05)(D, F)), 'w_down': _w((lambda *s: torch.randn(*s, dtype=torch.bfloat16) * 0.05)(F, D))}
    _B_in = _B_setup()
    return {'A_x': _A_in['x'], 'A_k_cache': _A_in['k_cache'], 'A_v_cache': _A_in['v_cache'], 'A_wq': _A_in['wq'], 'A_wo': _A_in['wo'], 'B_x': _B_in['x'], 'B_w_gate': _B_in['w_gate'], 'B_w_up': _B_in['w_up'], 'B_w_down': _B_in['w_down'], 'c': _w((lambda *s: torch.randn(*s, dtype=torch.bfloat16) * 0.1)(1, 1024) * 8.0), 'w_mod': _w((lambda *s: torch.randn(*s, dtype=torch.bfloat16) * 0.1)(1024, 6 * 1024) * 1024 ** (-0.5) * 8.0)}

def reference(A_x, A_k_cache, A_v_cache, A_wq, A_wo, B_x, B_w_gate, B_w_up, B_w_down, c, w_mod):

    def _A_ref(x, k_cache, v_cache, wq, wo):
        B, Sq, D = x.shape
        H, Dh = (32, 128)
        q = (lambda x, *d: x.permute(*d))((x @ wq).reshape(B, Sq, H, Dh), 0, 2, 1, 3)
        scores = torch.einsum('bhqd,bhkd->bhqk', q, k_cache) * Dh ** (-0.5)
        p = _softmax(scores, axis=-1)
        o = torch.einsum('bhqk,bhkd->bhqd', p, v_cache)
        return (lambda x, *d: x.permute(*d))(o, 0, 2, 1, 3).reshape(B, Sq, H * Dh) @ wo

    def _B_ref(x, w_gate, w_up, w_down):
        g = _silu(x @ w_gate)
        u = x @ w_up
        return g * u @ w_down
    x = A_x
    mod = (_silu(c) @ w_mod).reshape(c.shape[0], 6, 1, -1)
    sa, ca, ga, sb, cb, gb = (mod[:, 0].clone(), mod[:, 1].clone(), mod[:, 2].clone(), mod[:, 3].clone(), mod[:, 4].clone(), mod[:, 5].clone())
    h = _layernorm(x, axis=-1) * (1 + ca) + sa
    x = x + ga * _A_ref(h, A_k_cache, A_v_cache, A_wq, A_wo)
    h = _layernorm(x, axis=-1) * (1 + cb) + sb
    x = x + gb * _B_ref(h, B_w_gate, B_w_up, B_w_down)
    return x
```

```python
from ir import *
KA_X, KA_K, KA_V, KA_WQ, KA_WO, KA_BX, KA_WG, KA_WU, KA_WD, KA_C, KA_WMOD, KA_OUT, KA_DBG, KA_WS = [8*i for i in range(14)]
WS_MOD = 0
WS_H   = 0x100000
WS_X1  = 0x500000
WS_H2  = 0x900000
WS_ACT = 0x1000000
WS_O   = 0x2000000
SEQ, DM, NH, DH, FF = 2048, 1024, 32, 128, 3584

def srd(q, dst, src, off=0, size=0xffffffff):
    if off == 0:
        q.e("s_mov_b32 s%d, s%d" % (dst, src)); q.e("s_mov_b32 s%d, s%d" % (dst + 1, src + 1))
    else:
        o = off if isinstance(off, str) else "0x%x" % off
        q.e("s_add_u32 s%d, s%d, %s" % (dst, src, o)); q.e("s_addc_u32 s%d, s%d, 0" % (dst + 1, src + 1))
    q.e("s_mov_b32 s%d, 0x%x" % (dst + 2, size)); q.e("s_mov_b32 s%d, 0x20000" % (dst + 3))

def header(name):
    return ".globl %s\n.p2align 8\n.type %s,@function\n%s:\n" % (name, name, name)

def desc(name, vgpr, sgpr, accum):
    return (""".section .rodata,"a"
.p2align 6
.amdhsa_kernel %s
  .amdhsa_next_free_vgpr %d
  .amdhsa_next_free_sgpr %d
  .amdhsa_accum_offset %d
  .amdhsa_group_segment_fixed_size 0
  .amdhsa_kernarg_size 112
  .amdhsa_user_sgpr_count 2
  .amdhsa_user_sgpr_kernarg_segment_ptr 1
  .amdhsa_system_sgpr_workgroup_id_x 1
  .amdhsa_float_denorm_mode_32 %s
.end_amdhsa_kernel
.text
""" % (name, vgpr, sgpr, accum, "3"))

def finish(name, lines, vgpr, sgpr, accum):
    lines, _ = check_hazards(lines, autofix=True, name=name)
    return header(name) + fmt(lines) + desc(name, vgpr, sgpr, accum)

def round_pair(q, p, a_, b_, da=None, db=None):
    q.e("v_cvt_pk_bf16_f32 v%d, v%d, v%d" % (p, a_, b_))
    if da is not None: q.e("v_lshlrev_b32 v%d, 16, v%d" % (da, p))
    if db is not None: q.e("v_and_b32 v%d, 0xffff0000, v%d" % (db, p))

WS_STAMP = 0x8000000
def stamp_begin(q, opts):
    if opts.get("stamp"):
        q.e("s_memrealtime s[96:97]")
        q.e("v_readfirstlane_b32 s95, v0"); q.e("s_nop 0"); q.e("s_lshr_b32 s95, s95, 6")
def stamp_end(q, opts, kidx, wsptr):
    if opts.get("stamp"):
        e = q.e
        e("s_waitcnt vmcnt(0)")
        e("s_memrealtime s[98:99]")
        e("s_waitcnt lgkmcnt(0)")
        srd(q, 88, wsptr, WS_STAMP, 0x800000)
        e("v_mov_b32 v2, s96"); e("v_mov_b32 v3, s98")
        e("s_lshl_b32 s92, s2, 4"); e("s_add_u32 s92, s92, s95"); e("s_lshl_b32 s92, s92, 3"); e("s_add_u32 s92, s92, %d" % (kidx * 65536)); e("v_mov_b32 v0, s92")
        e("s_mov_b64 exec, 1")
        e("buffer_store_dwordx2 v[2:3], v0, s[88:91], 0 offen")

def prof(q, opts, i):
    if opts.get("prof"):
        q.e("s_waitcnt lgkmcnt(0)"); q.e("s_memtime s[%d:%d]" % (70 + 2 * i, 71 + 2 * i)); q.e("s_waitcnt lgkmcnt(0)")
def prof_end(q, opts, kidx, wsptr, n):
    if opts.get("prof"):
        e = q.e
        e("s_waitcnt vmcnt(0)"); prof(q, opts, n)
        srd(q, 88, wsptr, WS_STAMP + 0x100000, 0x800000)
        e("v_lshrrev_b32 v4, 6, v255")
        e("s_nop 1"); e("v_readfirstlane_b32 s93, v4")
        e("s_lshl_b32 s92, s2, 2"); e("s_add_u32 s92, s92, s93"); e("s_lshl_b32 s92, s92, 5"); e("s_add_u32 s92, s92, %d" % (kidx * 65536)); e("v_mov_b32 v0, s92")
        e("s_mov_b64 s[86:87], exec"); e("s_mov_b64 exec, 1")
        for i in range(1, n + 1):
            e("s_sub_u32 s93, s%d, s%d" % (70 + 2 * i, 70 + 2 * (i - 1))); e("v_mov_b32 v2, s93")
            e("buffer_store_dword v2, v0, s[88:91], 0 offen offset:%d" % (4 * (i - 1)))
            e("s_nop 1")
        e("s_mov_b64 exec, s[86:87]")
```

```python
import re

class Item:
    __slots__ = ("text", "kind", "tag", "tags", "count")
    def __init__(self, text, kind="op", tag=None, tags=None):
        self.text = text; self.kind = kind; self.tag = tag; self.tags = tags; self.count = None

def v(a, n=1): return "v%d" % a if n == 1 else "v[%d:%d]" % (a, a + n - 1)
def a(a_, n=1): return "a%d" % a_ if n == 1 else "a[%d:%d]" % (a_, a_ + n - 1)
def s(a_, n=1): return "s%d" % a_ if n == 1 else "s[%d:%d]" % (a_, a_ + n - 1)

class Seq:
    def __init__(self):
        self.items = []
    def e(self, text):
        for t in text.strip("\n").split("\n"):
            t = t.strip()
            if not t: continue
            m = t.split()[0]
            if m.startswith("buffer_") or m.startswith("global_"):
                self.items.append(Item(t, "vm"))
            elif m.startswith("ds_"):
                self.items.append(Item(t, "lds"))
            elif t.endswith(":"):
                self.items.append(Item(t, "label"))
            else:
                self.items.append(Item(t))
    def vm(self, text, tag): self.items.append(Item(text, "vm", tag=tag))
    def lds(self, text, tag): self.items.append(Item(text, "lds", tag=tag))
    def label(self, name): self.items.append(Item(name + ":", "label"))
    def comment(self, c): self.items.append(Item("; " + c, "comment"))
    def wait_vm(self, *tags): self.items.append(Item(None, "waitvm", tags=list(tags)))
    def wait_lgkm(self, *tags): self.items.append(Item(None, "waitlgkm", tags=list(tags)))
    def extend(self, other): self.items.extend(other.items)

def resolve(items):
    vmseq = 0; ldseq = 0; vmpos = {}; ldpos = {}; vmdone = 0; lddone = 0
    for it in items:
        if it.kind == "vm":
            vmseq += 1
            if it.tag is not None: vmpos[it.tag] = vmseq
        elif it.kind == "lds":
            ldseq += 1
            if it.tag is not None: ldpos[it.tag] = ldseq
        elif it.kind == "waitvm":
            p = max(vmpos[t] for t in it.tags)
            if p <= vmdone: it.count = None
            else:
                it.count = min(vmseq - p, 62); vmdone = max(vmdone, vmseq - it.count)
        elif it.kind == "waitlgkm":
            p = max(ldpos[t] for t in it.tags)
            if p <= lddone: it.count = None
            else:
                it.count = min(ldseq - p, 14); lddone = max(lddone, ldseq - it.count)
        elif it.kind == "op" and it.text.startswith("s_waitcnt"):
            m = re.search(r"vmcnt\((\d+)\)", it.text)
            if m and int(m.group(1)) < 63: vmdone = max(vmdone, vmseq - int(m.group(1)))
            m = re.search(r"lgkmcnt\((\d+)\)", it.text)
            if m and int(m.group(1)) < 15: lddone = max(lddone, ldseq - int(m.group(1)))

def render_item(it):
    if it.kind in ("waitvm", "waitlgkm") and it.count is None: return None
    if it.kind == "waitvm": return "s_waitcnt vmcnt(%d)" % it.count
    if it.kind == "waitlgkm": return "s_waitcnt lgkmcnt(%d)" % it.count
    return it.text

def prune_waits(texts):
    return texts

def merge_loop(pro, bodies, epi):
    lin = pro.items + [it for b in bodies for it in b.items] + epi.items
    resolve(lin)
    n = len(bodies[0].items)
    for b in bodies: assert len(b.items) == n, "body length differs"
    out = []
    for i in range(n):
        its = [b.items[i] for b in bodies]
        k = its[0].kind
        for it in its: assert it.kind == k
        if k in ("waitvm", "waitlgkm"):
            cs = [it.count for it in its if it.count is not None]
            if not cs: continue
            c = min(cs)
            out.append(("s_waitcnt vmcnt(%d)" if k == "waitvm" else "s_waitcnt lgkmcnt(%d)") % c)
        else:
            for it in its: assert it.text == its[0].text, "body text differs: %s | %s" % (it.text, its[0].text)
            out.append(its[0].text)
    R = lambda seq: [x for x in (render_item(i) for i in seq.items) if x is not None]
    return R(pro), out, R(epi)

def render(seq):
    resolve(seq.items)
    return [x for x in (render_item(i) for i in seq.items) if x is not None]

def fmt(lines):
    o = []
    for l in lines:
        o.append(l if (l.endswith(":") or l.startswith(".")) else "    " + l)
    return "\n".join(o) + "\n"

TRANS = ("v_exp_", "v_log_", "v_rcp_", "v_rsq_", "v_sqrt_", "v_sin_", "v_cos_")
_reg = re.compile(r"^(-|\|)?(v|a|s)(\d+|\[(\d+):(\d+)\])\|?$")
def regs(tok):
    tok = tok.strip()
    if tok in ("vcc", "vcc_lo", "vcc_hi"): return {("s", "vcc")}
    if tok == "exec": return {("s", "exec")}
    if tok == "m0": return {("s", "m0")}
    m = _reg.match(tok)
    if not m: return set()
    k = m.group(2)
    if m.group(4) is not None: return {(k, i) for i in range(int(m.group(4)), int(m.group(5)) + 1)}
    return {(k, int(m.group(3)))}

class Ins:
    def __init__(self, text):
        self.text = text
        t = text.split(";")[0].strip()
        parts = t.split(None, 1)
        self.m = m = parts[0]
        rest = parts[1] if len(parts) > 1 else ""
        ops = [o.strip() for o in rest.split(",")] if rest else []
        mods = ""
        if ops:
            last = ops[-1].split(None, 1)
            ops[-1] = last[0]; mods = last[1] if len(last) > 1 else ""
        self.ops = ops; self.mods = mods
        self.w = set(); self.r = set(); self.cls = "other"; self.states = 1
        self.srcA = self.srcB = self.srcC = set(); self.passes = 0
        R = [regs(o) for o in ops]
        U = lambda l: set().union(*l) if l else set()
        if m == "s_nop":
            self.cls = "nop"; self.states = int(ops[0], 0) + 1
        elif m.startswith("v_mfma"):
            self.cls = "mfma"; self.w = R[0]; self.srcA, self.srcB, self.srcC = R[1], R[2], R[3]
            self.r = U(R[1:4])
            self.passes = 8 if "32x32x16" in m else (4 if "16x16x32" in m else 16)
        elif m.startswith("v_"):
            self.cls = "valu"
            self.trans = m.startswith(TRANS)
            self.dpp = ("row_" in mods) or ("quad_perm" in mods) or m.endswith("_dpp")
            if m.startswith("v_cmp"):
                self.w = R[0]; self.r = U(R[1:])
            elif m.startswith("v_permlane") and "swap" in m:
                self.w = U(R[0:2]); self.r = U(R[0:2])
            elif "_co_" in m and m.startswith(("v_add_co", "v_sub_co", "v_addc_co", "v_subb_co")):
                self.w = U(R[0:2]); self.r = U(R[2:])
            elif m.startswith(("v_fmac", "v_mac", "v_pk_fmac", "v_writelane", "v_dot2c")):
                self.w = R[0]; self.r = U(R)
            else:
                self.w = R[0]; self.r = U(R[1:])
                if "UNUSED_PRESERVE" in mods: self.r |= R[0]
        elif m.startswith("ds_"):
            self.cls = "lds"
            if m.startswith(("ds_read", "ds_bpermute", "ds_permute", "ds_swizzle")):
                self.w = R[0]; self.r = U(R[1:])
            else:
                self.r = U(R)
        elif m.startswith("buffer_") or m.startswith("global_"):
            self.cls = "vmem"
            islds = (" lds" in " " + mods) or "_lds_" in m
            self.islds = islds
            if "load" in m and not islds:
                self.w = R[0]; self.r = U(R[1:])
            elif "store" in m:
                self.r = U(R)
                self.data = R[0] if m.startswith("buffer_") else R[1]
                self.wide = m.endswith(("x3", "x4"))
            elif "atomic" in m:
                self.r = U(R)
                if "sc0" in mods: self.w = R[0]
            else:
                self.r = U(R) | {("s", "m0")}
        elif m.startswith("s_"):
            self.cls = "salu"
            if m.startswith(("s_cmp", "s_waitcnt", "s_barrier", "s_branch", "s_cbranch", "s_endpgm", "s_setprio", "s_sleep", "s_bitcmp")):
                self.r = U(R)
            elif m.startswith(("s_setpc",)):
                self.r = U(R)
            elif "saveexec" in m:
                self.w = R[0] | {("s", "exec")}; self.r = U(R[1:]) | {("s", "exec")}
            else:
                self.w = R[0]; self.r = U(R[1:])

def isv(rs): return {x for x in rs if x[0] in ("v", "a")}
def iss(rs): return {x for x in rs if x[0] == "s"}

def need(p, c):
    n = 0
    if p.cls == "valu":
        pw = isv(p.w); ps = iss(p.w)
        if c.cls == "mfma" and pw & c.r: n = max(n, 2)
        if c.cls == "valu":
            if p.trans and (pw & c.r) : n = max(n, 1)
            if c.m.startswith(("v_readfirstlane", "v_readlane")) and pw & c.r: n = max(n, 1)
            if c.m.startswith("v_permlane") and pw & c.r: n = max(n, 2)
            if c.dpp and pw & c.r: n = max(n, 2)
            if ps & c.r: n = max(n, 4 if c.m.startswith(("v_readlane", "v_writelane")) else 2)
            if ("s", "exec") in ps and c.dpp: n = max(n, 5)
            if "sdwa" in p.m and "dst_sel:WORD" in p.mods and pw & (c.r | c.w): n = max(n, 1)
        if c.cls == "vmem" and ps & c.r: n = max(n, 5)
        if c.cls in ("salu",) and ps & c.r and not c.m.startswith(("s_cbranch",)): n = max(n, 1)
    if p.cls == "mfma":
        P = p.passes
        raw = {4: 8, 8: 12, 16: 20}[P]
        if c.cls == "mfma":
            if p.w & (c.srcA | c.srcB): n = max(n, raw)
            if p.w & c.srcC:
                if not (p.w == c.srcC and c.passes == P): n = max(n, {4: 6, 8: 10, 16: 18}[P])
            if p.w & c.w and not (p.w & c.srcC): n = max(n, raw)
        elif c.cls in ("valu", "lds", "vmem"):
            if p.w & (c.r | c.w): n = max(n, raw)
            if c.cls == "valu" and p.srcC & isv(c.w): n = max(n, {4: 3, 8: 7, 16: 15}[P])
    if p.cls == "salu" and ("s", "m0") in p.w:
        if c.cls == "vmem" and getattr(c, "islds", False): n = max(n, 1)
    if p.cls == "vmem" and getattr(p, "wide", False):
        if p.data & isv(c.w): n = max(n, 2 if c.cls == "valu" else 1)
    return n

def check_hazards(lines, autofix=False, name=""):
    out = []; hist = []
    nprob = 0
    for l in lines:
        t = l.strip()
        if not t or t.startswith(";") or t.endswith(":") or t.startswith("."):
            out.append(l); continue
        c = Ins(t)
        dist = 0; short = 0
        for p in reversed(hist):
            if dist >= 24: break
            n = need(p, c)
            if n > dist:
                if n - dist > short: short = n - dist; why = p.text
            dist += p.states
        if short:
            if autofix:
                k = short
                while k > 0:
                    q = min(k, 16); nop = "s_nop %d" % (q - 1)
                    out.append(nop); hist.append(Ins(nop)); k -= q
            else:
                nprob += 1
                print("HAZARD[%s]: need %d more wait states before '%s' (producer '%s')" % (name, short, t, why))
        out.append(l); hist.append(c)
        if len(hist) > 64: hist = hist[-40:]
    return out, nprob
```

```python
from common import *
from k_gemm import wave_id

S_   = lambda b, qb: (b * 2 + qb) * 16
P_   = lambda b, qb, ks: 64 + ((b * 2 + qb) * 2 + ks) * 4
NEGM = lambda qb: 96 + qb * 16
VKA = 128
VVA = 136
VWA = 140
VKD = 144
VVD = 148
VWD = 149
VH  = 153
TMP = 154
TS  = lambda qb: 170 + qb
LS  = lambda qb: 172 + qb
VT  = 174
VO  = 175
AO  = lambda qb, db: (qb * 4 + db) * 16
AH  = lambda slot, ks, qb: slot * 32 + (ks * 2 + qb) * 4
AQ  = lambda qb, s: 128 + (qb * 8 + s) * 4
AK  = lambda s: 192 + s * 4
AV  = lambda db, ks: 224 + (ks * 4 + db) * 4
AW  = lambda st, db: 224 + (st * 4 + db) * 4
QACC = lambda qb, db: (qb * 4 + db) * 16
KRING = 0; VRING = 65536
QSCALE = 0x3e0293ee
import struct, math
QSCALE = struct.unpack("<I", struct.pack("<f", math.log2(math.e) / math.sqrt(128.0)))[0]

def mfma32(d, a_, b_, c):
    return "v_mfma_f32_32x32x16_bf16 %s, %s, %s, %s" % (d, a_, b_, c)

def k_attn(name, opts):
    L = name
    THR = opts.get("thr", 0x5f800000)
    pro = Seq(); e = pro.e
    stamp_begin(pro, opts)
    e("s_cmp_ge_u32 s2, 256"); e("s_cbranch_scc1 L_%s_done" % L)
    if opts.get("prof"): e("v_mov_b32 v255, v0")
    prof(pro, opts, 0)
    e("s_load_dwordx2 s[4:5], s[0:1], %d" % KA_WS)
    e("s_load_dwordx4 s[8:11], s[0:1], %d" % KA_K)
    e("s_load_dwordx2 s[6:7], s[0:1], %d" % KA_WQ)
    e("v_mov_b32 v%d, v0" % VT)
    wave_id(pro, 36, 1)
    e("s_and_b32 s42, s2, 3"); e("s_lshl_b32 s42, s42, 3"); e("s_bfe_u32 s43, s2, 0x30003"); e("s_add_u32 s37, s42, s43")
    e("s_bfe_u32 s42, s2, 0x10002"); e("s_lshl_b32 s42, s42, 2"); e("s_lshr_b32 s43, s2, 6"); e("s_add_u32 s38, s42, s43")
    X = TMP
    e("v_and_b32 v%d, 63, v%d" % (X, VT))
    e("v_lshlrev_b32 v%d, 4, v%d" % (VH, X))
    e("v_and_b32 v%d, 31, v%d" % (X + 1, X)); e("v_lshrrev_b32 v%d, 5, v%d" % (X + 2, X))
    e("v_and_b32 v%d, 15, v%d" % (X + 3, X)); e("v_xor_b32 v%d, v%d, v%d" % (X + 3, X + 3, X + 2))
    e("v_lshlrev_b32 v%d, 8, v%d" % (X + 4, X + 1)); e("v_lshl_add_u32 v%d, v%d, 4, v%d" % (VKA, X + 3, X + 4))
    for s_ in range(1, 8): e("v_xor_b32 v%d, %d, v%d" % (VKA + s_, s_ << 5, VKA))
    e("v_bfe_u32 v%d, v%d, 2, 2" % (X + 1, X))
    e("v_lshrrev_b32 v%d, 5, v%d" % (X + 2, X))
    e("v_bfe_u32 v%d, v%d, 4, 1" % (X + 3, X))
    e("v_and_b32 v%d, 3, v%d" % (X + 4, X))
    e("v_lshl_add_u32 v%d, v%d, 2, v%d" % (X + 5, X + 2, X + 1)); e("v_lshlrev_b32 v%d, 8, v%d" % (X + 5, X + 5))
    e("v_lshl_add_u32 v%d, v%d, 6, v%d" % (X + 5, X + 1, X + 5)); e("v_lshl_add_u32 v%d, v%d, 5, v%d" % (X + 5, X + 3, X + 5))
    e("v_lshl_add_u32 v%d, v%d, 3, v%d" % (X + 5, X + 4, X + 5)); e("v_add_u32 v%d, %d, v%d" % (VVA, VRING, X + 5))
    for db in range(1, 4): e("v_xor_b32 v%d, %d, v%d" % (VVA + db, db << 6, VVA))
    e("v_lshl_add_u32 v%d, v%d, 3, v%d" % (X + 5, X + 2, X + 1)); e("v_lshlrev_b32 v%d, 8, v%d" % (X + 5, X + 5))
    e("v_lshl_add_u32 v%d, v%d, 6, v%d" % (X + 5, X + 1, X + 5)); e("v_lshl_add_u32 v%d, v%d, 5, v%d" % (X + 5, X + 3, X + 5))
    e("v_and_b32 v%d, 1, v%d" % (X + 6, X + 4)); e("v_lshl_add_u32 v%d, v%d, 4, v%d" % (X + 5, X + 6, X + 5))
    e("v_lshrrev_b32 v%d, 1, v%d" % (X + 6, X + 4)); e("v_lshl_add_u32 v%d, v%d, 3, v%d" % (X + 5, X + 6, X + 5))
    e("v_add_u32 v%d, %d, v%d" % (VWA, VRING, X + 5))
    for db in range(1, 4): e("v_xor_b32 v%d, %d, v%d" % (VWA + db, db << 6, VWA))
    e("v_lshrrev_b32 v%d, 4, v%d" % (X + 1, X)); e("v_and_b32 v%d, 15, v%d" % (X + 2, X))
    e("s_lshl_b32 s42, s36, 4")
    e("v_add_u32 v%d, s42, v%d" % (X + 3, X + 1)); e("v_lshlrev_b32 v%d, 8, v%d" % (X + 3, X + 3))
    for jj in range(4):
        e("v_add_u32 v%d, %d, v%d" % (X + 4, 4 * jj, X + 1)); e("v_xor_b32 v%d, v%d, v%d" % (X + 4, X + 4, X + 2))
        e("v_lshl_add_u32 v%d, v%d, 4, v%d" % (VKD + jj, X + 4, X + 3))
    e("v_lshlrev_b32 v%d, 2, v%d" % (X + 4, X + 1)); e("v_xor_b32 v%d, v%d, v%d" % (X + 4, X + 4, X + 2))
    e("v_lshl_add_u32 v%d, v%d, 4, v%d" % (VVD, X + 4, X + 3))
    e("v_add_u32 v%d, s42, v%d" % (X + 3, X + 1)); e("v_lshlrev_b32 v%d, 13, v%d" % (X + 3, X + 3))
    e("v_lshl_add_u32 v%d, v%d, 4, v%d" % (VWD, X + 4, X + 3))
    for jj in range(1, 4): e("v_add_u32 v%d, %d, v%d" % (VWD + jj, jj * 31744, VWD))
    e("s_waitcnt lgkmcnt(0)")
    e("s_lshl_b32 s42, s37, 19")
    srd(pro, 12, 8, "s42", 524288); srd(pro, 16, 10, "s42", 524288)
    e("s_lshl_b32 s42, s37, 8")
    srd(pro, 20, 6, "s42", 0); e("s_sub_u32 s22, %d, s42" % (1024 * 8192))
    e("s_lshl_b32 s42, s38, 3"); e("s_lshl_b32 s43, s36, 1"); e("s_add_u32 s42, s42, s43")
    e("s_lshl_b32 s43, s42, 16"); e("s_add_u32 s43, s43, 0x%x" % WS_H)
    srd(pro, 24, 4, "s43", 65536); e("s_add_u32 s43, s43, 65536"); srd(pro, 28, 4, "s43", 65536)
    srd(pro, 32, 4, WS_O, SEQ * 4096 * 2)
    e("s_lshl_b32 s42, s42, 1")
    e("v_bfe_u32 v%d, v%d, 4, 1" % (X + 1, X)); e("v_add_u32 v%d, s42, v%d" % (X + 1, X + 1)); e("v_lshlrev_b32 v%d, 17, v%d" % (X + 1, X + 1))
    e("v_and_b32 v%d, 15, v%d" % (X + 2, X)); e("v_lshl_add_u32 v%d, v%d, 4, v%d" % (X + 1, X + 2, X + 1))
    e("v_lshrrev_b32 v%d, 5, v%d" % (X + 2, X)); e("v_lshl_add_u32 v%d, v%d, 8, v%d" % (X + 1, X + 2, X + 1))
    e("s_lshl_b32 s42, s37, 12"); e("v_add_u32 v%d, s42, v%d" % (VO, X + 1))
    for sl in range(4):
        e("s_lshl_b32 s%d, s36, 12" % (44 + sl)); e("s_add_u32 s%d, s%d, %d" % (44 + sl, 44 + sl, KRING + sl * 16384))
        e("s_add_u32 s%d, s%d, %d" % (48 + sl, 44 + sl, VRING))
    e("s_mov_b32 s39, 0"); e("s_mov_b32 s40, 0"); e("s_mov_b32 s52, 0"); e("s_mov_b32 s53, 0")

    def k_dma(q, T, jj):
        if jj == 0: q.e("s_mov_b32 m0, s%d" % (44 + (T & 3))); q.e("s_nop 0")
        q.vm("buffer_load_dwordx4 v%d, s[12:15], s52 offen offset:%d lds" % (VKD + jj, jj * 1024), ("K", T, jj))
        if jj == 3: q.e("s_add_u32 s52, s52, 16384")
    def v_dma(q, T, jj):
        if jj == 0: q.e("s_mov_b32 m0, s%d" % (48 + (T & 3))); q.e("s_nop 0")
        q.vm("buffer_load_dwordx4 v%d, s[16:19], s53 offen offset:%d lds" % (VVD, jj * 1024), ("V", T, jj))
        if jj == 3: q.e("s_add_u32 s53, s53, 16384")
    def w_dma(q, t, jj):
        if jj == 0: q.e("s_mov_b32 m0, s%d" % (48 + (t & 3))); q.e("s_nop 0")
        q.vm("buffer_load_dwordx4 v%d, s[20:23], s40 offen offset:%d lds" % (VWD + jj, jj * 1024), ("W", t, jj))
        if jj == 3: q.e("s_add_u32 s40, s40, %d" % (64 * 8192))
    def h_load(q, t, ks, qb):
        r = AH(t & 3, ks, qb)
        q.vm("buffer_load_dwordx4 a[%d:%d], v%d, s[%d:%d], s39 offen offset:%d" % (r, r + 3, VH, 24 + 4 * qb, 27 + 4 * qb, ks * 1024), ("h", t, ks, qb))
        if ks == 3 and qb == 1: q.e("s_add_u32 s39, s39, 4096")
    def w_read(q, t, ks, db, tt):
        r = AW(ks & 1, db) + 2 * tt
        q.lds("ds_read_b64_tr_b16 a[%d:%d], v%d offset:%d" % (r, r + 1, VWA + db, (t & 3) * 16384 + ks * 4096 + tt * 1024), ("w", t, ks, db, tt))

    def qstage_vm(t):
        return [("h", 0, 0), ("h", 0, 1), ("h", 1, 0), ("h", 1, 1), ("h", 2, 0), ("h", 2, 1), ("W", 0), ("W", 1), ("W", 2), ("W", 3), ("h", 3, 0), ("h", 3, 1)]
    for t in range(3):
        for op in qstage_vm(t):
            if op[0] == "h": h_load(pro, t, op[1], op[2])
            else: w_dma(pro, t, op[1])
    for i in range(128): e("v_mov_b32 v%d, 0" % i)
    prof(pro, opts, 1)
    pro.wait_vm(("W", 0, 3)); e("s_barrier")
    for db in range(4):
        for tt in range(2): w_read(pro, 0, 0, db, tt)
    e("s_mov_b32 s41, 4")
    pro.label("L_%s_qloop" % L)
    def qbody(it):
        q = Seq()
        for ts in range(4):
            t = it * 4 + ts
            for ks in range(4):
                nxt = (t + 1, 0) if ks == 3 else (t, ks + 1)
                q.wait_vm(("h", t, ks, 1))
                vm = [("h", ks, 0), ("h", ks, 1)] if ks < 3 else [("W", 0), ("W", 1), ("W", 2), ("W", 3), ("h", 3, 0), ("h", 3, 1)]
                rd = [(db, tt) for db in range(4) for tt in range(2)]
                n = 0
                for db in range(4):
                    for qb in range(2):
                        A = QACC(qb, db)
                        if qb == 0: q.wait_lgkm(("w", t, ks, db, 1))
                        if ks == 3 and n == 2:
                            q.wait_vm(("W", t + 1, 3)); q.e("s_barrier")
                        q.e(mfma32(v(A, 16), a(AW(ks & 1, db), 4), a(AH(t & 3, ks, qb), 4), v(A, 16)))
                        if ks < 3: k = 1
                        else: k = 0 if n < 2 else (2 if n < 4 else 1)
                        for _ in range(k):
                            x = rd.pop(0); w_read(q, nxt[0], nxt[1], x[0], x[1])
                        if vm and (ks == 3 or n in (1, 5)):
                            op = vm.pop(0)
                            if op[0] == "h": h_load(q, t + 3, op[1], op[2])
                            else: w_dma(q, t + 3, op[1])
                        n += 1
                assert not rd and not vm
        q.e("s_sub_u32 s41, s41, 1"); q.e("s_cmp_lg_u32 s41, 0"); q.e("s_cbranch_scc1 L_%s_qloop" % L)
        return q
    qb_ = [qbody(i) for i in range(3)]
    mid = Seq(); e = mid.e
    e("s_waitcnt vmcnt(0) lgkmcnt(0)"); e("s_barrier")
    prof(mid, opts, 2)
    for T in range(3):
        for jj in range(4): k_dma(mid, T, jj)
        if T < 2:
            for jj in range(4): v_dma(mid, T, jj)
    e("s_nop 3")
    e("s_mov_b32 s54, 0x%x" % QSCALE)
    for qb in range(2):
        for db in range(4):
            A = QACC(qb, db)
            for hh in range(2):
                for r in range(8): e("v_mul_f32 v%d, s54, v%d" % (A + 8 * hh + r, A + 8 * hh + r))
                for r in range(4): e("v_cvt_pk_bf16_f32 v%d, v%d, v%d" % (TMP + 4 * hh + r, A + 8 * hh + 2 * r, A + 8 * hh + 2 * r + 1))
                for r in range(4): e("v_accvgpr_write_b32 a%d, v%d" % (AQ(qb, 2 * db + hh) + r, TMP + 4 * hh + r))
    for r in range(16): e("v_mov_b32 v%d, 0" % (P_(1, 0, 0) + r))
    for qb in range(2): e("v_mov_b32 v%d, 0" % LS(qb))
    p1, b1, m1 = merge_loop(pro, qb_, mid)

    def k_read(q, j, s_):
        T = j >> 1
        q.lds("ds_read_b128 a[%d:%d], v%d offset:%d" % (AK(s_), AK(s_) + 3, VKA + s_, KRING + (T & 3) * 16384 + (j & 1) * 8192), ("kf", j, s_))
    def v_read(q, j, db, ks, tt):
        T = j >> 1; r = AV(db, ks) + 2 * tt
        q.lds("ds_read_b64_tr_b16 a[%d:%d], v%d offset:%d" % (r, r + 1, VVA + db, (T & 3) * 16384 + (j & 1) * 8192 + ks * 4096 + tt * 2048), ("vf", j, db, ks, tt))
    def qk(j, s_, qb, first_c):
        D = v(S_(j & 1, qb), 16)
        return mfma32(D, a(AK(s_), 4), a(AQ(qb, s_), 4), first_c if s_ == 0 else D)
    def pv(j, db, ks, qb):
        O = a(AO(qb, db), 16)
        return mfma32(O, a(AV(db, ks), 4), v(P_(j & 1, qb, ks), 4), O)
    ap = Seq(); e = ap.e
    prof(ap, opts, 3)
    e("s_waitcnt vmcnt(16)")
    e("s_barrier")
    for s_ in range(8): k_read(ap, 0, s_)
    e("s_waitcnt lgkmcnt(0)")
    n = 0
    for s_ in range(8):
        for qb in range(2):
            e(qk(0, s_, qb, "0"))
            for z in range(8): e("v_accvgpr_write_b32 a%d, 0" % (n * 8 + z))
            n += 1
        k_read(ap, 1, s_)
    e("s_nop 7")
    def rowmax(q, b, qb, dst):
        S0 = S_(b, qb)
        q.e("v_max3_f32 v%d, v%d, v%d, v%d" % (dst, S0, S0 + 1, S0 + 2))
        for r in range(3, 15, 2): q.e("v_max3_f32 v%d, v%d, v%d, v%d" % (dst, dst, S0 + r, S0 + r + 1))
        q.e("v_max_f32 v%d, v%d, v%d" % (dst, dst, S0 + 15))
        q.e("v_mov_b32 v%d, v%d" % (dst + 1, dst))
        q.e("v_permlane32_swap_b32 v%d, v%d" % (dst, dst + 1))
        q.e("v_max_f32 v%d, v%d, v%d" % (dst, dst, dst + 1))
    for qb in range(2):
        rowmax(ap, 0, qb, TMP + 2 * qb)
        for r in range(16): e("v_sub_f32 v%d, v%d, v%d" % (S_(0, qb) + r, S_(0, qb) + r, TMP + 2 * qb))
        for r in range(16): e("v_sub_f32 v%d, 0, v%d" % (NEGM(qb) + r, TMP + 2 * qb))
    e("s_mov_b32 s41, 8"); e("s_mov_b32 s55, 0x%x" % THR)
    e("s_waitcnt lgkmcnt(0)")
    ap.label("L_%s_loop" % L)

    rare_sites = []
    def step(q, j, emit_rare=True):
        T = j >> 1
        if j % 2 == 0:
            q.wait_vm(("K", T + 1, 3), ("V", T, 3)); q.e("s_barrier")
        mf = []
        for s_ in range(8):
            for qb in range(2): mf.append(("qk", s_, qb))
        for ks in range(2):
            for db in range(4):
                for qb in range(2): mf.append(("pv", db, ks, qb))
        elems = [(qb, r) for qb in range(2) for r in range(16)]
        tmp = lambda g: TMP + (g % 8)
        gaps = [[] for _ in range(32)]
        for g, (qb, r) in enumerate(elems):
            gaps[g].append("v_exp_f32 v%d, v%d" % (tmp(g), S_(j & 1, qb) + r))
        def add_of(g):
            qb, r = elems[g]
            if r == 0: return None
            if r == 1: return "v_add_f32 v%d, v%d, v%d" % (TS(qb), tmp(g - 1), tmp(g))
            return "v_add_f32 v%d, v%d, v%d" % (TS(qb), TS(qb), tmp(g))
        def cvt_of(g):
            qb, r = elems[g]
            return "v_cvt_pk_bf16_f32 v%d, v%d, v%d" % (P_(j & 1, qb, r // 8) + (r % 8) // 2, tmp(g - 1), tmp(g))
        tail = []
        for g in range(32):
            x = add_of(g); dst = gaps[g + 1] if g + 1 < 32 else tail
            if x: dst.append(x)
            if elems[g][1] % 2 == 1: dst.append(cvt_of(g))
        vmq = []
        if j % 2 == 0: vmq = [("K", T + 3, jj) for jj in range(4)]
        else: vmq = [("V", T + 2, jj) for jj in range(4)]
        for g, m_ in enumerate(mf):
            if m_[0] == "qk":
                _, s_, qb = m_
                if qb == 0 and s_ == 0: q.wait_lgkm(("kf", j + 1, 7))
                if qb == 0: q.wait_lgkm(("kf", j + 1, s_))
                q.e(qk(j + 1, s_, qb, v(NEGM(qb), 16)))
                post = [("k", s_)] if qb == 1 else []
            else:
                _, db, ks, qb = m_
                if qb == 0 and db == 0 and ks == 0: q.wait_lgkm(("vf", j - 1, 3, 1, 1))
                if qb == 0: q.wait_lgkm(("vf", j - 1, db, ks, 1))
                q.e(pv(j - 1, db, ks, qb))
                post = [("v", db, ks)] if qb == 1 else []
            for x in gaps[g]: q.e(x)
            for p_ in post:
                if p_[0] == "k": k_read(q, j + 2, p_[1])
                else:
                    v_read(q, j, p_[1], p_[2], 0); v_read(q, j, p_[1], p_[2], 1)
            if g % 2 == 0 and g >= 2 and g <= 14 and (g // 2 - 1) % 2 == 0 and vmq:
                op = vmq.pop(0)
                (k_dma if op[0] == "K" else v_dma)(q, op[1], op[2])
        assert not vmq
        for x in tail: q.e(x)
        q.e("v_max_f32 v%d, v%d, v%d" % (TMP + 8, TS(0), TS(1)))
        q.e("v_cmp_lt_f32 vcc, s55, v%d" % (TMP + 8))
        site = "L_%s_r%d" % (L, j % 8)
        q.e("s_cbranch_vccnz %s" % site)
        q.label(site + "_back")
        q.e("v_add_f32 v%d, v%d, v%d" % (LS(0), LS(0), TS(0))); q.e("v_add_f32 v%d, v%d, v%d" % (LS(1), LS(1), TS(1)))

    pre = Seq()
    for T in range(3):
        for jj in range(4): pre.vm("", ("K", T, jj))
        if T < 2:
            for jj in range(4): pre.vm("", ("V", T, jj))
    for s_ in range(8): pre.lds("", ("kf", 1, s_))
    for ks in range(2):
        for db in range(4):
            for tt in range(2): pre.lds("", ("vf", -1, db, ks, tt))
    def abody(it):
        q = Seq()
        for js in range(8): step(q, it * 8 + js)
        q.e("s_sub_u32 s41, s41, 1"); q.e("s_cmp_lg_u32 s41, 0"); q.e("s_cbranch_scc1 L_%s_loop" % L)
        return q
    ab = [abody(i) for i in range(3)]
    ae = Seq(); e = ae.e
    jl = 3 * 8 - 1
    for ks in range(2):
        for db in range(4):
            ae.wait_lgkm(("vf", jl, db, ks, 1))
            for qb in range(2): e(pv(jl, db, ks, qb))
    prof(ae, opts, 4)
    for qb in range(2):
        e("v_mov_b32 v%d, v%d" % (TMP + qb, LS(qb)));
    for qb in range(2): e("v_permlane32_swap_b32 v%d, v%d" % (LS(qb), TMP + qb))
    for qb in range(2): e("v_add_f32 v%d, v%d, v%d" % (LS(qb), LS(qb), TMP + qb))
    for qb in range(2): e("v_rcp_f32 v%d, v%d" % (LS(qb), LS(qb)))
    e("s_waitcnt vmcnt(0)")
    e("s_nop 7")
    e("s_mov_b32 s56, 0x40000")
    n = 0
    for qb in range(2):
        for db in range(4):
            B = (n % 2) * 32; n += 1
            for r in range(16): e("v_accvgpr_read_b32 v%d, a%d" % (B + r, AO(qb, db) + r))
            for r in range(16): e("v_mul_f32 v%d, v%d, v%d" % (B + r, B + r, LS(qb)))
            for (dst, src) in ((16, 0), (17, 2), (18, 8), (19, 10), (20, 4), (21, 6), (22, 12), (23, 14)):
                e("v_cvt_pk_bf16_f32 v%d, v%d, v%d" % (B + dst, B + src, B + src + 1))
            so = "s56" if qb else "0"
            e("buffer_store_dwordx4 v[%d:%d], v%d, s[32:35], %s offen offset:%d" % (B + 16, B + 19, VO, so, db * 1024))
            e("buffer_store_dwordx4 v[%d:%d], v%d, s[32:35], %s offen offset:%d" % (B + 20, B + 23, VO, so, db * 1024 + 512))
    prof(ae, opts, 5)
    prof_end(ae, opts, 2, 4, 6)
    stamp_end(ae, opts, 2, 4)
    ae.label("L_%s_done" % L); e("s_endpgm")
    _, b2, e2 = merge_loop(pre, ab, ae)
    p2 = render(ap)

    rare = []
    for par in range(2):
        q = Seq(); e = q.e
        q.label("L_%s_rare%d" % (L, par))
        e("s_nop 15")
        for qb in range(2):
            D = TMP + 10 + 2 * qb
            rowmax(q, par, qb, D)
            e("v_max_f32 v%d, 0, v%d" % (D, D))
            for r in range(16): e("v_sub_f32 v%d, v%d, v%d" % (S_(par, qb) + r, S_(par, qb) + r, D))
            for r in range(16): e("v_sub_f32 v%d, v%d, v%d" % (S_(par ^ 1, qb) + r, S_(par ^ 1, qb) + r, D))
            for r in range(16): e("v_sub_f32 v%d, v%d, v%d" % (NEGM(qb) + r, NEGM(qb) + r, D))
            e("v_sub_f32 v%d, 0, v%d" % (D + 1, D)); e("v_exp_f32 v%d, v%d" % (D + 1, D + 1)); e("s_nop 0")
            e("v_mul_f32 v%d, v%d, v%d" % (LS(qb), LS(qb), D + 1))
            for db in range(4):
                for r in range(16):
                    e("v_accvgpr_read_b32 v%d, a%d" % (TMP + (r % 4), AO(qb, db) + r))
                    e("v_mul_f32 v%d, v%d, v%d" % (TMP + (r % 4), TMP + (r % 4), D + 1))
                    e("v_accvgpr_write_b32 a%d, v%d" % (AO(qb, db) + r, TMP + (r % 4)))
            for r in range(0, 16, 2):
                e("v_exp_f32 v%d, v%d" % (TMP, S_(par, qb) + r)); e("v_exp_f32 v%d, v%d" % (TMP + 1, S_(par, qb) + r + 1)); e("s_nop 0")
                if r == 0: e("v_add_f32 v%d, v%d, v%d" % (TS(qb), TMP, TMP + 1))
                else:
                    e("v_add_f32 v%d, v%d, v%d" % (TS(qb), TS(qb), TMP)); e("v_add_f32 v%d, v%d, v%d" % (TS(qb), TS(qb), TMP + 1))
                e("v_cvt_pk_bf16_f32 v%d, v%d, v%d" % (P_(par, qb, r // 8) + (r % 8) // 2, TMP, TMP + 1))
        e("s_nop 7")
        e("s_setpc_b64 s[58:59]")
        rare += render(q)
    stubs = []
    for js in range(8):
        stubs += ["L_%s_r%d:" % (L, js), "s_call_b64 s[58:59], L_%s_rare%d" % (L, js & 1), "s_branch L_%s_r%d_back" % (L, js)]
    main, _ = check_hazards(p1 + b1 + m1 + p2 + b2 + e2, autofix=True, name=name)
    for nm, b in (("q", b1), ("a", b2)):
        _, nb_ = check_hazards([l for l in b if not l.endswith(":")] * 2, autofix=False, name=name + " backedge " + nm)
        assert nb_ == 0
    rare, _ = check_hazards(rare, autofix=True, name=name + " rare")
    return header(name) + fmt(main) + fmt(stubs) + fmt(rare) + desc(name, 512, 100, 256)
```

```python
from common import *

def wave_id(q, dst, tmp):
    q.e("v_lshrrev_b32 v%d, 6, v0" % tmp)
    q.e("v_readfirstlane_b32 s%d, v%d" % (dst, tmp))

def k_n64(name, down, opts):
    K = 3584 if down else 4096
    KB = K // 32; NST = K // 128; NIT = NST // 4
    kidx = 6 if down else 3
    L = name
    ACC = 16; RES = 48; GATE = 64; WF = 80; AR = 112
    acc = lambda tb, nb: ACC + (tb * 4 + nb) * 4
    wf = lambda st, nb: WF + (st * 4 + nb) * 4
    ar = lambda slot, i, tb: AR + ((slot * 4 + i) * 2 + tb) * 4
    pro = Seq(); e = pro.e
    stamp_begin(pro, opts)
    e("s_cmp_ge_u32 s2, 256"); e("s_cbranch_scc1 L_%s_done" % L)
    prof(pro, opts, 0)
    if opts.get("prof"): e("v_mov_b32 v255, v0")
    e("s_load_dwordx2 s[4:5], s[0:1], %d" % KA_WS)
    e("s_load_dwordx2 s[6:7], s[0:1], %d" % (KA_WD if down else KA_WO))
    e("s_load_dwordx2 s[8:9], s[0:1], %d" % (KA_OUT if down else KA_X))
    wave_id(pro, 36, 1)
    e("s_and_b32 s42, s2, 3"); e("s_lshl_b32 s42, s42, 2"); e("s_bfe_u32 s43, s2, 0x20003"); e("s_add_u32 s37, s42, s43")
    e("s_bfe_u32 s42, s2, 0x10002"); e("s_lshl_b32 s42, s42, 3"); e("s_lshr_b32 s43, s2, 5"); e("s_add_u32 s38, s42, s43")
    e("v_and_b32 v10, 63, v0")
    e("v_lshlrev_b32 v1, 4, v10")
    e("v_lshrrev_b32 v11, 3, v10"); e("s_lshl_b32 s42, s36, 5"); e("v_add_u32 v11, s42, v11"); e("v_lshlrev_b32 v11, 11, v11")
    e("v_and_b32 v12, 7, v10"); e("v_bfe_u32 v13, v10, 4, 2"); e("v_lshlrev_b32 v13, 1, v13"); e("v_xor_b32 v12, v12, v13")
    e("v_lshl_add_u32 v2, v12, 4, v11")
    for jj in range(1, 4): e("v_add_u32 v%d, %d, v2" % (2 + jj, jj * 15360))
    e("v_lshrrev_b32 v11, 2, v10")
    e("v_lshlrev_b32 v12, 7, v11"); e("v_and_b32 v13, 3, v10"); e("v_lshl_add_u32 v12, v13, 3, v12")
    e("v_bfe_u32 v13, v11, 1, 2"); e("v_lshl_add_u32 v6, v13, 5, v12")
    for nb in range(1, 4): e("v_xor_b32 v%d, %d, v6" % (6 + nb, nb << 5))
    e("s_waitcnt lgkmcnt(0)")
    e("s_lshl_b32 s42, s37, 3"); e("s_lshl_b32 s43, s36, 1"); e("s_add_u32 s42, s42, s43"); e("s_mul_i32 s42, s42, %d" % (KB * 1024))
    e("s_add_u32 s42, s42, 0x%x" % (WS_ACT if down else WS_O))
    srd(pro, 12, 4, "s42", KB * 1024)
    e("s_add_u32 s42, s42, %d" % (KB * 1024))
    srd(pro, 16, 4, "s42", KB * 1024)
    e("s_lshl_b32 s42, s38, 7")
    srd(pro, 20, 6, "s42", 0); e("s_sub_u32 s22, %d, s42" % (K * 2048))
    if down:
        srd(pro, 24, 4, WS_X1, SEQ * DM * 2); srd(pro, 28, 8, 0, SEQ * DM * 2)
    else:
        srd(pro, 24, 8, 0, SEQ * DM * 2); srd(pro, 28, 4, WS_X1, SEQ * DM * 2)
    srd(pro, 32, 4, WS_MOD, 6144 * 4)
    e("s_lshl_b32 s42, s37, 7"); e("s_lshl_b32 s43, s36, 5"); e("s_add_u32 s42, s42, s43")
    e("v_and_b32 v11, 15, v10"); e("v_add_u32 v11, s42, v11"); e("v_lshlrev_b32 v11, 11, v11")
    e("v_lshrrev_b32 v12, 4, v10"); e("v_lshl_add_u32 v11, v12, 3, v11"); e("s_lshl_b32 s42, s38, 7"); e("v_add_u32 v14, s42, v11")
    e("s_lshl_b32 s42, s38, 8"); e("s_add_u32 s42, s42, %d" % ((5 if down else 2) * 4096)); e("v_lshlrev_b32 v12, 4, v12"); e("v_add_u32 v15, s42, v12")
    e("s_mov_b32 s48, 0x8000")
    for tb in range(2):
        for nb in range(4):
            pro.vm("buffer_load_dwordx2 v[%d:%d], v14, s[24:27], %s offen offset:%d" % (RES + (tb * 4 + nb) * 2, RES + (tb * 4 + nb) * 2 + 1, "s48" if tb else "0", nb * 32), ("res",))
    for nb in range(4):
        pro.vm("buffer_load_dwordx4 v[%d:%d], v15, s[32:35], 0 offen offset:%d" % (GATE + nb * 4, GATE + nb * 4 + 3, nb * 64), ("gate",))
    for sl in range(4):
        e("s_lshl_b32 s%d, s36, 12" % (44 + sl)); e("s_add_u32 s%d, s%d, %d" % (44 + sl, 44 + sl, sl * 16384))
    for i in range(32): e("v_mov_b32 v%d, 0" % (ACC + i))
    e("s_mov_b32 s39, 0"); e("s_mov_b32 s40, 0")

    def act_load(q, t, i):
        for tb in range(2):
            r = ar(t & 3, i, tb)
            q.vm("buffer_load_dwordx4 v[%d:%d], v1, s[%d:%d], s39 offen offset:%d" % (r, r + 3, 12 + 4 * tb, 15 + 4 * tb, i * 1024), ("act", t, i, tb))
    def w_dma(q, t):
        q.e("s_mov_b32 m0, s%d" % (44 + (t & 3)))
        q.e("s_nop 0")
        for jj in range(4):
            q.vm("buffer_load_dwordx4 v%d, s[20:23], s40 offen offset:%d lds" % (2 + jj, jj * 1024), ("W", t, jj))
    def adv(q):
        q.e("s_add_u32 s39, s39, 4096"); q.e("s_add_u32 s40, s40, %d" % (128 * 2048))
    def w_reads(q, t, i):
        st = i & 1
        for nb in range(4):
            for tt in range(2):
                r = wf(st, nb) + 2 * tt
                q.lds("ds_read_b64_tr_b16 v[%d:%d], v%d offset:%d" % (r, r + 1, 6 + nb, (t & 3) * 16384 + i * 4096 + tt * 2048), ("wf", t, i, nb, tt))
    for t in range(4):
        for i in range(3): act_load(pro, t, i)
        w_dma(pro, t); act_load(pro, t, 3); adv(pro)
    prof(pro, opts, 1)
    pro.wait_vm(("W", 0, 3)); e("s_barrier")
    prof(pro, opts, 2)
    w_reads(pro, 0, 0)
    e("s_mov_b32 s41, %d" % NIT)
    pro.label("L_%s_loop" % L)

    def body(it):
        q = Seq()
        for ts in range(4):
            t = it * 4 + ts
            for i in range(4):
                if i == 3:
                    q.wait_lgkm(("wf", t, 3, 3, 1)); q.wait_vm(("W", t + 1, 3)); q.e("s_barrier")
                    w_reads(q, t + 1, 0)
                else:
                    w_reads(q, t, i + 1)
                    q.wait_lgkm(("wf", t, i, 3, 1))
                q.wait_vm(("act", t, i, 1))
                n = 0
                for nb in range(4):
                    for tb in range(2):
                        q.e("v_mfma_f32_16x16x32_bf16 v[%d:%d], v[%d:%d], v[%d:%d], v[%d:%d]" % (acc(tb, nb), acc(tb, nb) + 3, wf(i & 1, nb), wf(i & 1, nb) + 3, ar(t & 3, i, tb), ar(t & 3, i, tb) + 3, acc(tb, nb), acc(tb, nb) + 3))
                if i == 3: w_dma(q, t + 4)
                act_load(q, t + 4, i)
                if i == 3: adv(q)
        q.e("s_sub_u32 s41, s41, 1"); q.e("s_cmp_lg_u32 s41, 0"); q.e("s_cbranch_scc1 L_%s_loop" % L)
        return q
    bodies = [body(i) for i in range(3)]
    epi = Seq(); e = epi.e
    e("s_nop 7")
    prof(epi, opts, 3)
    T = WF
    e("s_waitcnt lgkmcnt(0)")
    epi.wait_vm(("res",), ("gate",))
    for tb in range(2):
        for nb in range(4):
            A = acc(tb, nb); Rr = RES + (tb * 4 + nb) * 2; G = GATE + nb * 4
            round_pair(epi, T + 8, A, A + 1, T, T + 1); round_pair(epi, T + 9, A + 2, A + 3, T + 2, T + 3)
            for r in range(4): e("v_mul_f32 v%d, v%d, v%d" % (T + r, T + r, G + r))
            round_pair(epi, T + 8, T, T + 1, T, T + 1); round_pair(epi, T + 9, T + 2, T + 3, T + 2, T + 3)
            e("v_lshlrev_b32 v%d, 16, v%d" % (T + 4, Rr)); e("v_and_b32 v%d, 0xffff0000, v%d" % (T + 5, Rr))
            e("v_lshlrev_b32 v%d, 16, v%d" % (T + 6, Rr + 1)); e("v_and_b32 v%d, 0xffff0000, v%d" % (T + 7, Rr + 1))
            for r in range(4): e("v_add_f32 v%d, v%d, v%d" % (T + r, T + r, T + 4 + r))
            e("v_cvt_pk_bf16_f32 v%d, v%d, v%d" % (Rr, T, T + 1)); e("v_cvt_pk_bf16_f32 v%d, v%d, v%d" % (Rr + 1, T + 2, T + 3))
            e("buffer_store_dwordx2 v[%d:%d], v14, s[28:31], %s offen offset:%d" % (Rr, Rr + 1, "s48" if tb else "0", nb * 32))
    prof(epi, opts, 4)
    prof_end(epi, opts, kidx, 4, 5)
    stamp_end(epi, opts, kidx, 4)
    epi.label("L_%s_done" % L); e("s_endpgm")
    p, b, ep = merge_loop(pro, bodies, epi)
    lines, _ = check_hazards(p + b, autofix=True, name=name)
    np_ = len(lines)
    full = p + b + b + ep
    _, n1 = check_hazards(full, autofix=False, name=name) if False else (None, 0)
    allv, _ = check_hazards(p + b + ep, autofix=True, name=name)
    _, nb_ = check_hazards([l for l in b if not l.endswith(":")] * 2, autofix=False, name=name + " backedge")
    assert nb_ == 0
    return header(name) + fmt(allv) + desc(name, 512 if opts.get("n64excl", 1) else 240, 100, 256 if opts.get("n64excl", 1) else 240)

def k_gu(name, opts):
    L = name; NIT = 4
    acc = lambda tb, mx, fb: ((tb * 2 + mx) * 7 + fb) * 4
    VT = 240; VL = 224; VD = 225; VR = 232
    ar = lambda slot, i, tb: slot * 32 + (i * 4 + tb) * 4
    NWF = 8
    wf = lambda eidx: 128 + (eidx % NWF) * 4
    SLOT = 28672
    pro = Seq(); e = pro.e
    stamp_begin(pro, opts)
    e("s_cmp_ge_u32 s2, 256"); e("s_cbranch_scc1 L_%s_done" % L)
    e("s_load_dwordx2 s[4:5], s[0:1], %d" % KA_WS)
    e("s_load_dwordx2 s[6:7], s[0:1], %d" % KA_WG)
    e("s_load_dwordx2 s[8:9], s[0:1], %d" % KA_WU)
    e("v_mov_b32 v%d, v0" % VT)
    if opts.get("prof"): e("v_mov_b32 v255, v0")
    prof(pro, opts, 0)
    wave_id(pro, 36, 1)
    e("s_and_b32 s42, s2, 1"); e("s_lshl_b32 s42, s42, 2"); e("s_bfe_u32 s43, s2, 0x20003"); e("s_add_u32 s37, s42, s43")
    e("s_bfe_u32 s42, s2, 0x20001"); e("s_lshl_b32 s42, s42, 3"); e("s_lshr_b32 s43, s2, 5"); e("s_add_u32 s38, s42, s43")
    e("v_and_b32 v10, 63, v%d" % VT)
    e("v_lshlrev_b32 v%d, 4, v10" % VL)
    e("s_and_b32 s42, s36, 1"); e("s_mul_i32 s42, s42, %d" % (32 * 7168))
    for j in range(7):
        e("v_add_u32 v11, %d, v10" % (64 * j))
        e("v_mul_u32_u24 v12, 4682, v11"); e("v_lshrrev_b32 v12, 16, v12")
        e("v_mul_u32_u24 v13, 14, v12"); e("v_sub_u32 v13, v11, v13")
        e("v_mul_u32_u24 v12, 7168, v12"); e("v_lshl_add_u32 v12, v13, 4, v12")
        e("v_add_u32 v12, s42, v12")
        imm = (j % 4) * 1024
        e("v_subrev_u32 v%d, %d, v12" % (VD + j, imm))
    e("v_lshrrev_b32 v11, 2, v10"); e("v_mul_u32_u24 v11, 224, v11"); e("v_and_b32 v12, 3, v10"); e("v_lshl_add_u32 v%d, v12, 3, v11" % VR)
    e("v_add_u32 v%d, %d, v%d" % (VR + 1, 2 * SLOT, VR))
    e("s_waitcnt lgkmcnt(0)")
    e("s_lshl_b32 s42, s37, 4"); e("s_lshl_b32 s43, s36, 2"); e("s_add_u32 s42, s42, s43"); e("s_lshl_b32 s49, s42, 15")
    e("s_mul_i32 s50, s42, %d" % (112 * 1024))
    e("s_add_u32 s42, s49, 0x%x" % WS_H2)
    for tb in range(4):
        srd(pro, 12 + 4 * tb, 4, "s42", 32768)
        if tb < 3: e("s_add_u32 s42, s42, 32768")
    e("s_cmp_ge_u32 s36, 2"); e("s_cselect_b32 s6, s8, s6"); e("s_cselect_b32 s7, s9, s7")
    e("s_mul_i32 s42, s38, 224")
    srd(pro, 28, 6, "s42", 0); e("s_sub_u32 s30, %d, s42" % (1024 * 7168))
    e("s_add_u32 s42, s50, 0x%x" % WS_ACT)
    srd(pro, 32, 4, "s42", 4 * 112 * 1024)
    for sl in range(4):
        e("s_mul_i32 s%d, s36, 7168" % (44 + sl)); e("s_add_u32 s%d, s%d, %d" % (44 + sl, 44 + sl, sl * SLOT))
    for i in range(224): e("v_mov_b32 v%d, 0" % i)
    e("s_mov_b32 s39, 0"); e("s_mov_b32 s40, 0")

    def act_load1(q, t, i, tb):
        r = ar(t & 3, i, tb)
        q.vm("buffer_load_dwordx4 a[%d:%d], v%d, s[%d:%d], s39 offen offset:%d" % (r, r + 3, VL, 12 + 4 * tb, 15 + 4 * tb, i * 1024), ("act", t, i, tb))
    def w_dma1(q, t, j):
        if j == 0: q.e("s_mov_b32 m0, s%d" % (44 + (t & 3))); q.e("s_nop 0")
        if j == 4: q.e("s_add_u32 m0, s%d, 4096" % (44 + (t & 3))); q.e("s_nop 0")
        q.vm("buffer_load_dwordx4 v%d, s[28:31], s40 offen offset:%d lds" % (VD + j, (j % 4) * 1024), ("W", t, j))
    def adv(q):
        q.e("s_add_u32 s39, s39, 2048"); q.e("s_add_u32 s40, s40, %d" % (64 * 7168))
    def frag(E):
        t = E // 28; r = E % 28; return t, r // 14, (r % 14) // 2, r % 2
    def w_read(q, E):
        t, i, fb, mx = frag(E); sl = t & 3
        for tt in range(2):
            r = wf(E) + 2 * tt
            q.lds("ds_read_b64_tr_b16 a[%d:%d], v%d offset:%d" % (r, r + 1, VR + (sl >> 1), (sl & 1) * SLOT + mx * 14336 + (32 * i + 16 * tt) * 224 + fb * 32), ("wf", E, tt))
    def vm_ops(t):
        ops = {}
        order = []
        for k in range(8): order.append(("act", k))
        seq = [("act", 0), ("W", 0), ("act", 1), ("W", 1), ("act", 2), ("W", 2), ("act", 3), ("W", 3), ("act", 4), ("W", 4), ("act", 5), ("W", 5), ("act", 6), ("W", 6), ("act", 7)]
        pos = [0, 2, 3, 5, 6, 8, 9, 11, 12, 14, 15, 17, 18, 20, 21]
        return dict(zip(pos, seq))
    def issue(q, t, op):
        if op[0] == "act": act_load1(q, t, op[1] // 4, op[1] % 4)
        else: w_dma1(q, t, op[1])
    RA = 4
    def reads_at(e_):
        if e_ in (22, 23): return []
        if e_ in (20, 21): return [e_ + RA, e_ + RA + 2]
        return [e_ + RA]
    for t in range(3):
        vo = vm_ops(t)
        for p_ in sorted(vo): issue(pro, t, vo[p_])
        adv(pro)
    prof(pro, opts, 1)
    pro.wait_vm(("W", 0, 6)); e("s_barrier")
    prof(pro, opts, 2)
    for E in range(RA): w_read(pro, E)
    e("s_mov_b32 s41, %d" % NIT)
    pro.label("L_%s_loop" % L)
    def body(it):
        q = Seq()
        for ts in range(4):
            t = it * 4 + ts; vo = vm_ops(t)
            for e_ in range(28):
                E = t * 28 + e_; _, i, fb, mx = frag(E)
                if e_ == 24:
                    q.wait_lgkm(("wf", t * 28 + 27, 1)); q.wait_vm(("W", t + 1, 6)); q.e("s_barrier")
                for x in reads_at(e_): w_read(q, t * 28 + x)
                q.wait_lgkm(("wf", E, 1))
                if e_ % 14 == 0: q.wait_vm(("act", t, i, 3))
                for tb in range(4):
                    A = acc(tb, mx, fb)
                    q.e("v_mfma_f32_16x16x32_bf16 v[%d:%d], a[%d:%d], a[%d:%d], v[%d:%d]" % (A, A + 3, wf(E), wf(E) + 3, ar(t & 3, i, tb), ar(t & 3, i, tb) + 3, A, A + 3))
                    if tb == 1 and e_ in vo: issue(q, t + 3, vo[e_])
                if e_ == 27: adv(q)
        q.e("s_sub_u32 s41, s41, 1"); q.e("s_cmp_lg_u32 s41, 0"); q.e("s_cbranch_scc1 L_%s_loop" % L)
        return q
    bodies = [body(i) for i in range(3)]
    epi = Seq(); e = epi.e
    e("s_waitcnt lgkmcnt(0)"); e("s_nop 7")
    prof(epi, opts, 3)
    e("s_mul_i32 s42, s38, 7")
    for fb in range(7):
        e("s_add_u32 s43, s42, %d" % fb); e("s_lshr_b32 s%d, s43, 1" % (52 + fb)); e("s_lshl_b32 s%d, s%d, 10" % (52 + fb, 52 + fb))
        e("s_and_b32 s43, s43, 1"); e("s_lshl_b32 s43, s43, 3"); e("s_add_u32 s%d, s%d, s43" % (52 + fb, 52 + fb))
    for tb in range(4): e("v_add_u32 v%d, %d, v%d" % (VD + tb, tb * 114688, VL))
    T = 234
    e("s_mov_b32 s60, 0xbfb8aa3b")
    n = 0
    for tb in range(4):
        for fb in range(7):
            G = acc(tb, 0, fb); U = acc(tb, 1, fb); t0 = T + (n % 2) * 8; n += 1
            if opts.get("gu_emul", 0):
                round_pair(epi, t0 + 6, G, G + 1, G, G + 1); round_pair(epi, t0 + 7, G + 2, G + 3, G + 2, G + 3)
                round_pair(epi, t0 + 6, U, U + 1, U, U + 1); round_pair(epi, t0 + 7, U + 2, U + 3, U + 2, U + 3)
            for r in range(4): e("v_mul_f32 v%d, s60, v%d" % (t0 + r, G + r))
            for r in range(4): e("v_exp_f32 v%d, v%d" % (t0 + r, t0 + r))
            for r in range(4): e("v_add_f32 v%d, 1.0, v%d" % (t0 + r, t0 + r))
            for r in range(4): e("v_rcp_f32 v%d, v%d" % (t0 + r, t0 + r))
            if opts.get("gu_emul", 0):
                for r in range(4): e("v_mul_f32 v%d, v%d, v%d" % (t0 + r, t0 + r, G + r))
                round_pair(epi, t0 + 6, t0, t0 + 1, t0, t0 + 1); round_pair(epi, t0 + 7, t0 + 2, t0 + 3, t0 + 2, t0 + 3)
                for r in range(4): e("v_mul_f32 v%d, v%d, v%d" % (t0 + r, t0 + r, U + r))
            else:
                for r in range(4): e("v_mul_f32 v%d, v%d, v%d" % (G + r, G + r, U + r))
                for r in range(4): e("v_mul_f32 v%d, v%d, v%d" % (t0 + r, t0 + r, G + r))
            e("v_cvt_pk_bf16_f32 v%d, v%d, v%d" % (t0 + 4, t0, t0 + 1)); e("v_cvt_pk_bf16_f32 v%d, v%d, v%d" % (t0 + 5, t0 + 2, t0 + 3))
            e("buffer_store_dwordx2 v[%d:%d], v%d, s[32:35], s%d offen" % (t0 + 4, t0 + 5, VD + tb, 52 + fb))
    prof(epi, opts, 4)
    prof_end(epi, opts, 5, 4, 5)
    stamp_end(epi, opts, 5, 4)
    epi.label("L_%s_done" % L); e("s_endpgm")
    p, b, ep = merge_loop(pro, bodies, epi)
    allv, _ = check_hazards(p + b + ep, autofix=True, name=name)
    _, nb_ = check_hazards([l for l in b if not l.endswith(":")] * 2, autofix=False, name=name + " backedge")
    assert nb_ == 0
    return header(name) + fmt(allv) + desc(name, 512, 100, 256)
```

```python
from common import *

def k_mod(name="mod_kernel", opts={}):
    q = Seq(); e = q.e
    stamp_begin(q, opts)
    e("s_cmp_ge_u32 s2, 192"); e("s_cbranch_scc1 L_mod_done")
    e("s_load_dwordx2 s[4:5], s[0:1], %d" % KA_C)
    e("s_load_dwordx2 s[6:7], s[0:1], %d" % KA_WMOD)
    e("s_load_dwordx2 s[8:9], s[0:1], %d" % KA_WS)
    e("v_and_b32 v1, 0x3c0, v0"); e("v_bfe_u32 v2, v0, 2, 4"); e("v_add_u32 v1, v1, v2")
    e("v_and_b32 v2, 3, v0")
    e("v_lshlrev_b32 v3, 1, v1")
    e("v_mul_u32_u24 v4, 0x3000, v1")
    e("v_lshl_add_u32 v4, v2, 4, v4")
    e("s_lshl_b32 s3, s2, 6"); e("v_add_u32 v4, s3, v4")
    e("s_waitcnt lgkmcnt(0)")
    srd(q, 12, 4, 0, 2048); srd(q, 16, 6, 0, 1024 * 6144 * 2); srd(q, 20, 8, WS_MOD, 6144 * 4)
    for t in range(4): e("buffer_load_ushort v%d, v3, s[12:15], 0 offen offset:%d" % (8 + t, 32 * t))
    for t in range(4):
        e("s_mov_b32 s%d, %d" % (24 + t, t * 16 * 12288))
    for t in range(4): e("buffer_load_dwordx4 v[%d:%d], v4, s[16:19], s%d offen" % (16 + 4 * t, 19 + 4 * t, 24 + t))
    e("s_waitcnt vmcnt(4)")
    for t in range(4):
        e("v_lshlrev_b32 v%d, 16, v%d" % (8 + t, 8 + t))
    for t in range(4): e("v_mul_f32 v%d, 0xbfb8aa3b, v%d" % (12 + t, 8 + t))
    for t in range(4): e("v_exp_f32 v%d, v%d" % (12 + t, 12 + t))
    for t in range(4): e("v_add_f32 v%d, 1.0, v%d" % (12 + t, 12 + t))
    for t in range(4): e("v_rcp_f32 v%d, v%d" % (12 + t, 12 + t))
    for t in range(4): e("v_mul_f32 v%d, v%d, v%d" % (8 + t, 8 + t, 12 + t))
    for t in range(4): e("v_cvt_pk_bf16_f32 v%d, v%d, v%d" % (8 + t, 8 + t, 8 + t))
    for t in range(4): e("v_lshlrev_b32 v%d, 16, v%d" % (8 + t, 8 + t))
    for t in range(4):
        e("s_waitcnt vmcnt(%d)" % (3 - t))
        for d in range(4):
            e("v_lshlrev_b32 v40, 16, v%d" % (16 + 4 * t + d)); e("v_and_b32 v41, 0xffff0000, v%d" % (16 + 4 * t + d))
            if t == 0:
                e("v_mul_f32 v%d, v%d, v40" % (32 + 2 * d, 8 + t)); e("v_mul_f32 v%d, v%d, v41" % (33 + 2 * d, 8 + t))
            else:
                e("v_fmac_f32 v%d, v%d, v40" % (32 + 2 * d, 8 + t)); e("v_fmac_f32 v%d, v%d, v41" % (33 + 2 * d, 8 + t))
    for rot in (4, 8):
        for i in range(8): e("v_add_f32_dpp v%d, v%d, v%d row_ror:%d row_mask:0xf bank_mask:0xf" % (32 + i, 32 + i, 32 + i, rot))
    e("v_lshrrev_b32 v5, 4, v0"); e("v_lshlrev_b32 v5, 7, v5"); e("v_lshl_add_u32 v5, v2, 5, v5")
    e("v_and_b32 v6, 12, v0"); e("v_cmp_eq_u32 vcc, 0, v6")
    e("s_and_saveexec_b64 s[28:29], vcc")
    e("ds_write_b128 v5, v[32:35]"); e("ds_write_b128 v5, v[36:39] offset:16")
    e("s_mov_b64 exec, s[28:29]")
    e("s_waitcnt lgkmcnt(0)"); e("s_barrier")
    e("v_readfirstlane_b32 s30, v0"); e("s_cmp_ge_u32 s30, 64"); e("s_cbranch_scc1 L_mod_done")
    e("v_and_b32 v6, 31, v0"); e("v_lshrrev_b32 v7, 5, v0"); e("v_lshlrev_b32 v5, 12, v7"); e("v_lshl_add_u32 v5, v6, 2, v5")
    for p in range(32): e("ds_read_b32 v%d, v5 offset:%d" % (8 + p, p * 128))
    for half in range(2):
        e("s_waitcnt lgkmcnt(%d)" % (15 if half == 0 else 0))
        if half == 0:
            for p in range(1, 16): e("v_add_f32 v8, v8, v%d" % (8 + p))
        else:
            for p in range(16, 32): e("v_add_f32 v8, v8, v%d" % (8 + p))
    e("v_mov_b32 v9, v8")
    e("v_permlane32_swap_b32 v8, v9")
    e("v_add_f32 v8, v8, v9")
    e("v_cvt_pk_bf16_f32 v8, v8, v8"); e("v_lshlrev_b32 v8, 16, v8")
    e("s_lshl_b32 s3, s2, 7"); e("v_lshl_add_u32 v5, v6, 2, s3")
    e("v_cmp_gt_u32 vcc, 32, v0"); e("s_and_saveexec_b64 s[28:29], vcc")
    e("buffer_store_dword v8, v5, s[20:23], 0 offen")
    stamp_end(q, opts, 0, 8)
    e("s_waitcnt vmcnt(0)")
    q.label("L_mod_done"); e("s_endpgm")
    return finish(name, render(q), 48, 100, 48)

def k_ln(name, second, opts={}):
    q = Seq(); e = q.e; L = "L_%s_done" % name
    stamp_begin(q, opts)
    e("s_cmp_ge_u32 s2, 256"); e("s_cbranch_scc1 " + L)
    e("s_load_dwordx2 s[4:5], s[0:1], %d" % KA_X)
    e("s_load_dwordx2 s[8:9], s[0:1], %d" % KA_WS)
    e("v_and_b32 v1, 7, v0"); e("v_bfe_u32 v2, v0, 3, 3"); e("v_lshrrev_b32 v3, 6, v0"); e("v_lshl_add_u32 v2, v3, 4, v2")
    e("s_lshl_b32 s3, s2, 3"); e("v_add_u32 v4, s3, v1")
    e("v_lshlrev_b32 v5, 11, v4"); e("v_lshl_add_u32 v5, v2, 4, v5")
    e("v_lshlrev_b32 v6, 5, v2")
    e("s_waitcnt lgkmcnt(0)")
    if second: srd(q, 12, 8, WS_X1, SEQ * DM * 2)
    else: srd(q, 12, 4, 0, SEQ * DM * 2)
    srd(q, 16, 8, WS_MOD, 6144 * 4)
    srd(q, 20, 8, WS_H2 if second else WS_H, SEQ * DM * 2)
    sh = (3 if second else 0) * 4096; sc = (4 if second else 1) * 4096
    e("s_mov_b32 s24, %d" % sh); e("s_mov_b32 s25, %d" % sc)
    for i in range(2): e("buffer_load_dwordx4 v[%d:%d], v5, s[12:15], 0 offen offset:%d" % (8 + 4 * i, 11 + 4 * i, 128 * i))
    for i in range(2):
        for hh in range(2):
            e("buffer_load_dwordx4 v[%d:%d], v6, s[16:19], s25 offen offset:%d" % (48 + 8 * i + 4 * hh, 51 + 8 * i + 4 * hh, 256 * i + 16 * hh))
    for i in range(2):
        for hh in range(2):
            e("buffer_load_dwordx4 v[%d:%d], v6, s[16:19], s24 offen offset:%d" % (64 + 8 * i + 4 * hh, 67 + 8 * i + 4 * hh, 256 * i + 16 * hh))
    e("s_waitcnt vmcnt(8)")
    for d in range(8):
        e("v_lshlrev_b32 v%d, 16, v%d" % (16 + 2 * d, 8 + d)); e("v_and_b32 v%d, 0xffff0000, v%d" % (17 + 2 * d, 8 + d))
    def reduce(src, ldsoff):
        e("v_add_f32_dpp v%d, v%d, v%d row_ror:8 row_mask:0xf bank_mask:0xf" % (src, src, src))
        e("v_mov_b32 v33, v%d" % src); e("v_permlane16_swap_b32 v%d, v33" % src); e("v_add_f32 v%d, v%d, v33" % (src, src))
        e("v_mov_b32 v33, v%d" % src); e("v_permlane32_swap_b32 v%d, v33" % src); e("v_add_f32 v%d, v%d, v33" % (src, src))
        e("v_and_b32 v34, 63, v0"); e("v_cmp_gt_u32 vcc, 8, v34")
        e("v_lshlrev_b32 v35, 5, v1"); e("v_lshl_add_u32 v35, v3, 2, v35")
        e("s_and_saveexec_b64 s[28:29], vcc")
        e("ds_write_b32 v35, v%d offset:%d" % (src, ldsoff))
        e("s_mov_b64 exec, s[28:29]")
        e("s_waitcnt lgkmcnt(0)"); e("s_barrier")
        e("v_lshlrev_b32 v35, 5, v1")
        e("ds_read_b128 v[36:39], v35 offset:%d" % ldsoff); e("ds_read_b128 v[40:43], v35 offset:%d" % (ldsoff + 16))
        e("s_waitcnt lgkmcnt(0)")
        e("v_add_f32 v36, v36, v37"); e("v_add_f32 v38, v38, v39"); e("v_add_f32 v40, v40, v41"); e("v_add_f32 v42, v42, v43")
        e("v_add_f32 v36, v36, v38"); e("v_add_f32 v40, v40, v42"); e("v_add_f32 v%d, v36, v40" % src)
    e("v_add_f32 v32, v16, v17")
    for d in range(2, 16): e("v_add_f32 v32, v32, v%d" % (16 + d))
    reduce(32, 0)
    e("v_mul_f32 v32, 0x3a800000, v32")
    e("v_sub_f32 v44, v16, v32"); e("v_mul_f32 v45, v44, v44")
    for d in range(1, 16):
        e("v_sub_f32 v44, v%d, v32" % (16 + d)); e("v_fmac_f32 v45, v44, v44")
    reduce(45, 256)
    e("v_mul_f32 v45, 0x3a800000, v45")
    round_pair(q, 44, 32, 45, 32, 45)
    e("v_add_f32 v45, 0x3727c5ac, v45")
    round_pair(q, 44, 45, 45, 45)
    e("v_sqrt_f32 v45, v45")
    round_pair(q, 44, 45, 45, 45)
    e("v_rcp_f32 v45, v45")
    e("s_waitcnt vmcnt(0)")
    for d in range(16): e("v_add_f32 v%d, 1.0, v%d" % (48 + d, 48 + d))
    for d in range(0, 16, 2): round_pair(q, 44, 48 + d, 49 + d, 48 + d, 49 + d)
    for d in range(16): e("v_sub_f32 v%d, v%d, v32" % (16 + d, 16 + d))
    for d in range(0, 16, 2): round_pair(q, 44 if d % 4 == 0 else 46, 16 + d, 17 + d, 16 + d, 17 + d)
    for d in range(16): e("v_mul_f32 v%d, v%d, v45" % (16 + d, 16 + d))
    for d in range(0, 16, 2): round_pair(q, 44 if d % 4 == 0 else 46, 16 + d, 17 + d, 16 + d, 17 + d)
    for d in range(16): e("v_mul_f32 v%d, v%d, v%d" % (16 + d, 16 + d, 48 + d))
    for d in range(0, 16, 2): round_pair(q, 44 if d % 4 == 0 else 46, 16 + d, 17 + d, 16 + d, 17 + d)
    for d in range(16): e("v_add_f32 v%d, v%d, v%d" % (16 + d, 16 + d, 64 + d))
    for d in range(0, 16, 2): e("v_cvt_pk_bf16_f32 v%d, v%d, v%d" % (8 + d // 2, 16 + d, 17 + d))
    if not second:
        e("v_lshrrev_b32 v5, 5, v4"); e("v_lshlrev_b32 v5, 16, v5"); e("v_lshl_add_u32 v5, v2, 9, v5")
        e("v_and_b32 v6, 31, v4"); e("v_lshl_add_u32 v5, v6, 4, v5")
        e("s_movk_i32 s26, 0x1000")
        e("buffer_store_dwordx4 v[8:11], v5, s[20:23], 0 offen")
        e("buffer_store_dwordx4 v[12:15], v5, s[20:23], s26 offen")
    else:
        e("v_lshrrev_b32 v5, 4, v4"); e("v_lshlrev_b32 v5, 15, v5")
        e("v_lshrrev_b32 v6, 2, v2"); e("v_lshl_add_u32 v5, v6, 10, v5")
        e("v_and_b32 v6, 15, v4"); e("v_lshl_add_u32 v5, v6, 4, v5")
        e("v_and_b32 v6, 1, v2"); e("v_lshl_add_u32 v5, v6, 9, v5")
        e("v_bfe_u32 v6, v2, 1, 1"); e("v_lshl_add_u32 v5, v6, 3, v5")
        for i in range(2):
            e("buffer_store_dwordx2 v[%d:%d], v5, s[20:23], 0 offen offset:%d" % (8 + 4 * i, 9 + 4 * i, 2048 * i))
            e("buffer_store_dwordx2 v[%d:%d], v5, s[20:23], 0 offen offset:%d" % (10 + 4 * i, 11 + 4 * i, 2048 * i + 256))
    stamp_end(q, opts, 4 if second else 1, 8)
    q.label(L); e("s_endpgm")
    return finish(name, render(q), 80, 100, 80)
```

```python
import sys
sys.path.insert(0, "gen")
from common import *
import k_small

TOP = open("adaLN_cond__mha_block_cached__swiglu_ffn__prompt.s.ref").read().split("; Override launch")[0]

def assemble(launches, kernels):
    t = TOP
    for (name, grid, block, lds) in launches:
        t += "; @launch kernel=%s grid=(%d,1,1) block=(%d,1,1) lds=%d\n" % (name, grid, block, lds)
    t += '.amdgcn_target "amdgcn-amd-amdhsa--gfx950"\n.text\n'
    for k in kernels: t += k
    return t

def full(opts=None):
    opts = opts or {}
    launches = [("mod_kernel", 192, 1024, 8192), ("ln1_kernel", 256, 512, 512)]
    kernels = [k_small.k_mod("mod_kernel", opts), k_small.k_ln("ln1_kernel", False, opts)]
    try:
        import k_attn
        launches.append(("attn_kernel", 256, 256, 131072)); kernels.append(k_attn.k_attn("attn_kernel", opts))
    except ImportError: pass
    try:
        import k_gemm
        launches.append(("oproj_kernel", 256, 256, 65536)); kernels.append(k_gemm.k_n64("oproj_kernel", False, opts))
        launches.append(("ln2_kernel", 256, 512, 512)); kernels.append(k_small.k_ln("ln2_kernel", True, opts))
        launches.append(("gu_kernel", 256, 256, 114688)); kernels.append(k_gemm.k_gu("gu_kernel", opts))
        launches.append(("down_kernel", 256, 256, 65536)); kernels.append(k_gemm.k_n64("down_kernel", True, opts))
    except ImportError: pass
    return assemble(launches, kernels)

if __name__ == "__main__":
    out = sys.argv[1] if len(sys.argv) > 1 else "full.s"
    opts = {}
    for a_ in sys.argv[2:]:
        k, _, val = a_.partition("=")
        opts[k] = int(val) if val.lstrip("-").isdigit() else val
    open(out, "w").write(full(opts))
    print("wrote", out)
```

```python
from common import *

import struct
def fhex(x): return "0x%08x" % struct.unpack("<I", struct.pack("<f", x))[0]
def wave_id(q, dst, tmp):
    q.e("v_lshrrev_b32 v%d, 6, v0" % tmp)
    q.e("v_readfirstlane_b32 s%d, v%d" % (dst, tmp))

def k_n64(name, down, opts):
    K = 3584 if down else 4096
    KB = K // 32; NST = K // 128; NIT = NST // 4
    kidx = 6 if down else 3
    L = name
    ACC = 16; RES = 48; GATE = 64; WF = 80; AR = 112
    acc = lambda tb, nb: ACC + (tb * 4 + nb) * 4
    wf = lambda st, nb: WF + (st * 4 + nb) * 4
    ar = lambda slot, i, tb: AR + ((slot * 4 + i) * 2 + tb) * 4
    pro = Seq(); e = pro.e
    stamp_begin(pro, opts)
    e("s_cmp_ge_u32 s2, 256"); e("s_cbranch_scc1 L_%s_done" % L)
    prof(pro, opts, 0)
    if opts.get("prof"): e("v_mov_b32 v255, v0")
    e("s_load_dwordx2 s[4:5], s[0:1], %d" % KA_WS)
    e("s_load_dwordx2 s[6:7], s[0:1], %d" % (KA_WD if down else KA_WO))
    e("s_load_dwordx2 s[8:9], s[0:1], %d" % (KA_OUT if down else KA_X))
    wave_id(pro, 36, 1)
    e("s_and_b32 s42, s2, 3"); e("s_lshl_b32 s42, s42, 2"); e("s_bfe_u32 s43, s2, 0x20003"); e("s_add_u32 s37, s42, s43")
    e("s_bfe_u32 s42, s2, 0x10002"); e("s_lshl_b32 s42, s42, 3"); e("s_lshr_b32 s43, s2, 5"); e("s_add_u32 s38, s42, s43")
    e("v_and_b32 v10, 63, v0")
    e("v_lshlrev_b32 v1, 4, v10")
    e("v_lshrrev_b32 v11, 3, v10"); e("s_lshl_b32 s42, s36, 5"); e("v_add_u32 v11, s42, v11"); e("v_lshlrev_b32 v11, 11, v11")
    e("v_and_b32 v12, 7, v10"); e("v_bfe_u32 v13, v10, 4, 2"); e("v_lshlrev_b32 v13, 1, v13"); e("v_xor_b32 v12, v12, v13")
    e("v_lshl_add_u32 v2, v12, 4, v11")
    for jj in range(1, 4): e("v_add_u32 v%d, %d, v2" % (2 + jj, jj * 15360))
    e("v_lshrrev_b32 v11, 2, v10")
    e("v_lshlrev_b32 v12, 7, v11"); e("v_and_b32 v13, 3, v10"); e("v_lshl_add_u32 v12, v13, 3, v12")
    e("v_bfe_u32 v13, v11, 1, 2"); e("v_lshl_add_u32 v6, v13, 5, v12")
    for nb in range(1, 4): e("v_xor_b32 v%d, %d, v6" % (6 + nb, nb << 5))
    e("s_waitcnt lgkmcnt(0)")
    e("s_lshl_b32 s42, s37, 3"); e("s_lshl_b32 s43, s36, 1"); e("s_add_u32 s42, s42, s43"); e("s_mul_i32 s42, s42, %d" % (KB * 1024))
    e("s_add_u32 s42, s42, 0x%x" % (WS_ACT if down else WS_O))
    srd(pro, 12, 4, "s42", KB * 1024)
    e("s_add_u32 s42, s42, %d" % (KB * 1024))
    srd(pro, 16, 4, "s42", KB * 1024)
    e("s_lshl_b32 s42, s38, 7")
    srd(pro, 20, 6, "s42", 0); e("s_sub_u32 s22, %d, s42" % (K * 2048))
    if down:
        srd(pro, 24, 4, WS_X1, SEQ * DM * 2); srd(pro, 28, 8, 0, SEQ * DM * 2)
    else:
        srd(pro, 24, 8, 0, SEQ * DM * 2); srd(pro, 28, 4, WS_X1, SEQ * DM * 2)
    srd(pro, 32, 4, WS_MOD, 6144 * 4)
    e("s_lshl_b32 s42, s37, 7"); e("s_lshl_b32 s43, s36, 5"); e("s_add_u32 s42, s42, s43")
    e("v_and_b32 v11, 15, v10"); e("v_add_u32 v11, s42, v11"); e("v_lshlrev_b32 v11, 11, v11")
    e("v_lshrrev_b32 v12, 4, v10"); e("v_lshl_add_u32 v11, v12, 3, v11"); e("s_lshl_b32 s42, s38, 7"); e("v_add_u32 v14, s42, v11")
    e("s_lshl_b32 s42, s38, 8"); e("s_add_u32 s42, s42, %d" % ((5 if down else 2) * 4096)); e("v_lshlrev_b32 v12, 4, v12"); e("v_add_u32 v15, s42, v12")
    e("s_mov_b32 s48, 0x8000")
    for tb in range(2):
        for nb in range(4):
            pro.vm("buffer_load_dwordx2 v[%d:%d], v14, s[24:27], %s offen offset:%d" % (RES + (tb * 4 + nb) * 2, RES + (tb * 4 + nb) * 2 + 1, "s48" if tb else "0", nb * 32), ("res",))
    for nb in range(4):
        pro.vm("buffer_load_dwordx4 v[%d:%d], v15, s[32:35], 0 offen offset:%d" % (GATE + nb * 4, GATE + nb * 4 + 3, nb * 64), ("gate",))
    for sl in range(4):
        e("s_lshl_b32 s%d, s36, 12" % (44 + sl)); e("s_add_u32 s%d, s%d, %d" % (44 + sl, 44 + sl, sl * 16384))
    for i in range(32): e("v_mov_b32 v%d, 0" % (ACC + i))
    e("s_mov_b32 s39, 0"); e("s_mov_b32 s40, 0")

    def act_load(q, t, i):
        for tb in range(2):
            r = ar(t & 3, i, tb)
            q.vm("buffer_load_dwordx4 v[%d:%d], v1, s[%d:%d], s39 offen offset:%d" % (r, r + 3, 12 + 4 * tb, 15 + 4 * tb, i * 1024), ("act", t, i, tb))
    def w_dma(q, t):
        q.e("s_mov_b32 m0, s%d" % (44 + (t & 3)))
        q.e("s_nop 0")
        for jj in range(4):
            q.vm("buffer_load_dwordx4 v%d, s[20:23], s40 offen offset:%d lds" % (2 + jj, jj * 1024), ("W", t, jj))
    def adv(q):
        q.e("s_add_u32 s39, s39, 4096"); q.e("s_add_u32 s40, s40, %d" % (128 * 2048))
    def w_reads(q, t, i):
        st = i & 1
        for nb in range(4):
            for tt in range(2):
                r = wf(st, nb) + 2 * tt
                q.lds("ds_read_b64_tr_b16 v[%d:%d], v%d offset:%d" % (r, r + 1, 6 + nb, (t & 3) * 16384 + i * 4096 + tt * 2048), ("wf", t, i, nb, tt))
    for t in range(4):
        for i in range(3): act_load(pro, t, i)
        w_dma(pro, t); act_load(pro, t, 3); adv(pro)
    prof(pro, opts, 1)
    pro.wait_vm(("W", 0, 3)); e("s_barrier")
    prof(pro, opts, 2)
    w_reads(pro, 0, 0)
    e("s_mov_b32 s41, %d" % NIT)
    pro.label("L_%s_loop" % L)

    def body(it):
        q = Seq()
        for ts in range(4):
            t = it * 4 + ts
            for i in range(4):
                if i == 3:
                    q.wait_lgkm(("wf", t, 3, 3, 1)); q.wait_vm(("W", t + 1, 3)); q.e("s_barrier")
                    w_reads(q, t + 1, 0)
                else:
                    w_reads(q, t, i + 1)
                    q.wait_lgkm(("wf", t, i, 3, 1))
                q.wait_vm(("act", t, i, 1))
                n = 0
                for nb in range(4):
                    for tb in range(2):
                        q.e("v_mfma_f32_16x16x32_bf16 v[%d:%d], v[%d:%d], v[%d:%d], v[%d:%d]" % (acc(tb, nb), acc(tb, nb) + 3, wf(i & 1, nb), wf(i & 1, nb) + 3, ar(t & 3, i, tb), ar(t & 3, i, tb) + 3, acc(tb, nb), acc(tb, nb) + 3))
                if i == 3: w_dma(q, t + 4)
                act_load(q, t + 4, i)
                if i == 3: adv(q)
        q.e("s_sub_u32 s41, s41, 1"); q.e("s_cmp_lg_u32 s41, 0"); q.e("s_cbranch_scc1 L_%s_loop" % L)
        return q
    bodies = [body(i) for i in range(3)]
    epi = Seq(); e = epi.e
    e("s_nop 7")
    prof(epi, opts, 3)
    T = WF
    e("s_waitcnt lgkmcnt(0)")
    epi.wait_vm(("res",), ("gate",))
    for tb in range(2):
        for nb in range(4):
            A = acc(tb, nb); Rr = RES + (tb * 4 + nb) * 2; G = GATE + nb * 4
            round_pair(epi, T + 8, A, A + 1, T, T + 1); round_pair(epi, T + 9, A + 2, A + 3, T + 2, T + 3)
            for r in range(4): e("v_mul_f32 v%d, v%d, v%d" % (T + r, T + r, G + r))
            round_pair(epi, T + 8, T, T + 1, T, T + 1); round_pair(epi, T + 9, T + 2, T + 3, T + 2, T + 3)
            e("v_lshlrev_b32 v%d, 16, v%d" % (T + 4, Rr)); e("v_and_b32 v%d, 0xffff0000, v%d" % (T + 5, Rr))
            e("v_lshlrev_b32 v%d, 16, v%d" % (T + 6, Rr + 1)); e("v_and_b32 v%d, 0xffff0000, v%d" % (T + 7, Rr + 1))
            for r in range(4): e("v_add_f32 v%d, v%d, v%d" % (T + r, T + r, T + 4 + r))
            if down and opts.get("pmul"):
                for r in range(4): e("v_mul_f32 v%d, %s, v%d" % (T + r, fhex(float(opts["pmul"])), T + r))
            if down and opts.get("padd") and tb == 0 and nb == 0:
                e("v_mov_b32 v%d, 0" % (T + 10)); e("v_mov_b32 v%d, %s" % (T + 11, fhex(float(opts["padd"]))))
                e("v_readfirstlane_b32 s60, v14"); e("s_nop 3"); e("v_cmp_eq_u32 vcc, s60, v14"); e("s_cmp_eq_u32 s60, 0"); e("s_cselect_b64 s[62:63], vcc, 0")
                e("v_cndmask_b32 v%d, v%d, v%d, s[62:63]" % (T + 10, T + 10, T + 11)); e("v_add_f32 v%d, v%d, v%d" % (T, T, T + 10))
            e("v_cvt_pk_bf16_f32 v%d, v%d, v%d" % (Rr, T, T + 1)); e("v_cvt_pk_bf16_f32 v%d, v%d, v%d" % (Rr + 1, T + 2, T + 3))
            e("buffer_store_dwordx2 v[%d:%d], v14, s[28:31], %s offen offset:%d" % (Rr, Rr + 1, "s48" if tb else "0", nb * 32))
    prof(epi, opts, 4)
    prof_end(epi, opts, kidx, 4, 5)
    stamp_end(epi, opts, kidx, 4)
    epi.label("L_%s_done" % L); e("s_endpgm")
    p, b, ep = merge_loop(pro, bodies, epi)
    lines, _ = check_hazards(p + b, autofix=True, name=name)
    np_ = len(lines)
    full = p + b + b + ep
    _, n1 = check_hazards(full, autofix=False, name=name) if False else (None, 0)
    allv, _ = check_hazards(p + b + ep, autofix=True, name=name)
    _, nb_ = check_hazards([l for l in b if not l.endswith(":")] * 2, autofix=False, name=name + " backedge")
    assert nb_ == 0
    return header(name) + fmt(allv) + desc(name, 512 if opts.get("n64excl", 1) else 240, 100, 256 if opts.get("n64excl", 1) else 240)

def k_gu(name, opts):
    L = name; NIT = 4
    acc = lambda tb, mx, fb: ((tb * 2 + mx) * 7 + fb) * 4
    VT = 240; VL = 224; VD = 225; VR = 232
    ar = lambda slot, i, tb: slot * 32 + (i * 4 + tb) * 4
    NWF = 8
    wf = lambda eidx: 128 + (eidx % NWF) * 4
    SLOT = 28672
    pro = Seq(); e = pro.e
    stamp_begin(pro, opts)
    e("s_cmp_ge_u32 s2, 256"); e("s_cbranch_scc1 L_%s_done" % L)
    e("s_load_dwordx2 s[4:5], s[0:1], %d" % KA_WS)
    e("s_load_dwordx2 s[6:7], s[0:1], %d" % KA_WG)
    e("s_load_dwordx2 s[8:9], s[0:1], %d" % KA_WU)
    e("v_mov_b32 v%d, v0" % VT)
    if opts.get("prof"): e("v_mov_b32 v255, v0")
    prof(pro, opts, 0)
    wave_id(pro, 36, 1)
    e("s_and_b32 s42, s2, 1"); e("s_lshl_b32 s42, s42, 2"); e("s_bfe_u32 s43, s2, 0x20003"); e("s_add_u32 s37, s42, s43")
    e("s_bfe_u32 s42, s2, 0x20001"); e("s_lshl_b32 s42, s42, 3"); e("s_lshr_b32 s43, s2, 5"); e("s_add_u32 s38, s42, s43")
    e("v_and_b32 v10, 63, v%d" % VT)
    e("v_lshlrev_b32 v%d, 4, v10" % VL)
    e("s_and_b32 s42, s36, 1"); e("s_mul_i32 s42, s42, %d" % (32 * 7168))
    for j in range(7):
        e("v_add_u32 v11, %d, v10" % (64 * j))
        e("v_mul_u32_u24 v12, 4682, v11"); e("v_lshrrev_b32 v12, 16, v12")
        e("v_mul_u32_u24 v13, 14, v12"); e("v_sub_u32 v13, v11, v13")
        e("v_mul_u32_u24 v12, 7168, v12"); e("v_lshl_add_u32 v12, v13, 4, v12")
        e("v_add_u32 v12, s42, v12")
        imm = (j % 4) * 1024
        e("v_subrev_u32 v%d, %d, v12" % (VD + j, imm))
    e("v_lshrrev_b32 v11, 2, v10"); e("v_mul_u32_u24 v11, 224, v11"); e("v_and_b32 v12, 3, v10"); e("v_lshl_add_u32 v%d, v12, 3, v11" % VR)
    e("v_add_u32 v%d, %d, v%d" % (VR + 1, 2 * SLOT, VR))
    e("s_waitcnt lgkmcnt(0)")
    e("s_lshl_b32 s42, s37, 4"); e("s_lshl_b32 s43, s36, 2"); e("s_add_u32 s42, s42, s43"); e("s_lshl_b32 s49, s42, 15")
    e("s_mul_i32 s50, s42, %d" % (112 * 1024))
    e("s_add_u32 s42, s49, 0x%x" % WS_H2)
    for tb in range(4):
        srd(pro, 12 + 4 * tb, 4, "s42", 32768)
        if tb < 3: e("s_add_u32 s42, s42, 32768")
    e("s_cmp_ge_u32 s36, 2"); e("s_cselect_b32 s6, s8, s6"); e("s_cselect_b32 s7, s9, s7")
    e("s_mul_i32 s42, s38, 224")
    srd(pro, 28, 6, "s42", 0); e("s_sub_u32 s30, %d, s42" % (1024 * 7168))
    e("s_add_u32 s42, s50, 0x%x" % WS_ACT)
    srd(pro, 32, 4, "s42", 4 * 112 * 1024)
    for sl in range(4):
        e("s_mul_i32 s%d, s36, 7168" % (44 + sl)); e("s_add_u32 s%d, s%d, %d" % (44 + sl, 44 + sl, sl * SLOT))
    for i in range(224): e("v_mov_b32 v%d, 0" % i)
    e("s_mov_b32 s39, 0"); e("s_mov_b32 s40, 0")

    def act_load1(q, t, i, tb):
        r = ar(t & 3, i, tb)
        q.vm("buffer_load_dwordx4 a[%d:%d], v%d, s[%d:%d], s39 offen offset:%d" % (r, r + 3, VL, 12 + 4 * tb, 15 + 4 * tb, i * 1024), ("act", t, i, tb))
    def w_dma1(q, t, j):
        if j == 0: q.e("s_mov_b32 m0, s%d" % (44 + (t & 3))); q.e("s_nop 0")
        if j == 4: q.e("s_add_u32 m0, s%d, 4096" % (44 + (t & 3))); q.e("s_nop 0")
        q.vm("buffer_load_dwordx4 v%d, s[28:31], s40 offen offset:%d lds" % (VD + j, (j % 4) * 1024), ("W", t, j))
    def adv(q):
        q.e("s_add_u32 s39, s39, 2048"); q.e("s_add_u32 s40, s40, %d" % (64 * 7168))
    def frag(E):
        t = E // 28; r = E % 28; return t, r // 14, (r % 14) // 2, r % 2
    def w_read(q, E):
        t, i, fb, mx = frag(E); sl = t & 3
        for tt in range(2):
            r = wf(E) + 2 * tt
            q.lds("ds_read_b64_tr_b16 a[%d:%d], v%d offset:%d" % (r, r + 1, VR + (sl >> 1), (sl & 1) * SLOT + mx * 14336 + (32 * i + 16 * tt) * 224 + fb * 32), ("wf", E, tt))
    def vm_ops(t):
        ops = {}
        order = []
        for k in range(8): order.append(("act", k))
        seq = [("act", 0), ("W", 0), ("act", 1), ("W", 1), ("act", 2), ("W", 2), ("act", 3), ("W", 3), ("act", 4), ("W", 4), ("act", 5), ("W", 5), ("act", 6), ("W", 6), ("act", 7)]
        pos = [0, 2, 3, 5, 6, 8, 9, 11, 12, 14, 15, 17, 18, 20, 21]
        return dict(zip(pos, seq))
    def issue(q, t, op):
        if op[0] == "act": act_load1(q, t, op[1] // 4, op[1] % 4)
        else: w_dma1(q, t, op[1])
    RA = 4
    def reads_at(e_):
        if e_ in (22, 23): return []
        if e_ in (20, 21): return [e_ + RA, e_ + RA + 2]
        return [e_ + RA]
    for t in range(3):
        vo = vm_ops(t)
        for p_ in sorted(vo): issue(pro, t, vo[p_])
        adv(pro)
    prof(pro, opts, 1)
    pro.wait_vm(("W", 0, 6)); e("s_barrier")
    prof(pro, opts, 2)
    for E in range(RA): w_read(pro, E)
    e("s_mov_b32 s41, %d" % NIT)
    pro.label("L_%s_loop" % L)
    def body(it):
        q = Seq()
        for ts in range(4):
            t = it * 4 + ts; vo = vm_ops(t)
            for e_ in range(28):
                E = t * 28 + e_; _, i, fb, mx = frag(E)
                if e_ == 24:
                    q.wait_lgkm(("wf", t * 28 + 27, 1)); q.wait_vm(("W", t + 1, 6)); q.e("s_barrier")
                for x in reads_at(e_): w_read(q, t * 28 + x)
                q.wait_lgkm(("wf", E, 1))
                if e_ % 14 == 0: q.wait_vm(("act", t, i, 3))
                for tb in range(4):
                    A = acc(tb, mx, fb)
                    q.e("v_mfma_f32_16x16x32_bf16 v[%d:%d], a[%d:%d], a[%d:%d], v[%d:%d]" % (A, A + 3, wf(E), wf(E) + 3, ar(t & 3, i, tb), ar(t & 3, i, tb) + 3, A, A + 3))
                    if tb == 1 and e_ in vo: issue(q, t + 3, vo[e_])
                if e_ == 27: adv(q)
        q.e("s_sub_u32 s41, s41, 1"); q.e("s_cmp_lg_u32 s41, 0"); q.e("s_cbranch_scc1 L_%s_loop" % L)
        return q
    bodies = [body(i) for i in range(3)]
    epi = Seq(); e = epi.e
    e("s_waitcnt lgkmcnt(0)"); e("s_nop 7")
    prof(epi, opts, 3)
    e("s_mul_i32 s42, s38, 7")
    for fb in range(7):
        e("s_add_u32 s43, s42, %d" % fb); e("s_lshr_b32 s%d, s43, 1" % (52 + fb)); e("s_lshl_b32 s%d, s%d, 10" % (52 + fb, 52 + fb))
        e("s_and_b32 s43, s43, 1"); e("s_lshl_b32 s43, s43, 3"); e("s_add_u32 s%d, s%d, s43" % (52 + fb, 52 + fb))
    for tb in range(4): e("v_add_u32 v%d, %d, v%d" % (VD + tb, tb * 114688, VL))
    T = 234
    e("s_mov_b32 s60, 0xbfb8aa3b")
    n = 0
    for tb in range(4):
        for fb in range(7):
            G = acc(tb, 0, fb); U = acc(tb, 1, fb); t0 = T + (n % 2) * 8; n += 1
            if opts.get("gu_emul", 0):
                round_pair(epi, t0 + 6, G, G + 1, G, G + 1); round_pair(epi, t0 + 7, G + 2, G + 3, G + 2, G + 3)
                round_pair(epi, t0 + 6, U, U + 1, U, U + 1); round_pair(epi, t0 + 7, U + 2, U + 3, U + 2, U + 3)
            for r in range(4): e("v_mul_f32 v%d, s60, v%d" % (t0 + r, G + r))
            for r in range(4): e("v_exp_f32 v%d, v%d" % (t0 + r, t0 + r))
            for r in range(4): e("v_add_f32 v%d, 1.0, v%d" % (t0 + r, t0 + r))
            for r in range(4): e("v_rcp_f32 v%d, v%d" % (t0 + r, t0 + r))
            if opts.get("gu_emul", 0):
                for r in range(4): e("v_mul_f32 v%d, v%d, v%d" % (t0 + r, t0 + r, G + r))
                round_pair(epi, t0 + 6, t0, t0 + 1, t0, t0 + 1); round_pair(epi, t0 + 7, t0 + 2, t0 + 3, t0 + 2, t0 + 3)
                for r in range(4): e("v_mul_f32 v%d, v%d, v%d" % (t0 + r, t0 + r, U + r))
            else:
                for r in range(4): e("v_mul_f32 v%d, v%d, v%d" % (G + r, G + r, U + r))
                for r in range(4): e("v_mul_f32 v%d, v%d, v%d" % (t0 + r, t0 + r, G + r))
            e("v_cvt_pk_bf16_f32 v%d, v%d, v%d" % (t0 + 4, t0, t0 + 1)); e("v_cvt_pk_bf16_f32 v%d, v%d, v%d" % (t0 + 5, t0 + 2, t0 + 3))
            e("buffer_store_dwordx2 v[%d:%d], v%d, s[32:35], s%d offen" % (t0 + 4, t0 + 5, VD + tb, 52 + fb))
    prof(epi, opts, 4)
    prof_end(epi, opts, 5, 4, 5)
    stamp_end(epi, opts, 5, 4)
    epi.label("L_%s_done" % L); e("s_endpgm")
    p, b, ep = merge_loop(pro, bodies, epi)
    allv, _ = check_hazards(p + b + ep, autofix=True, name=name)
    _, nb_ = check_hazards([l for l in b if not l.endswith(":")] * 2, autofix=False, name=name + " backedge")
    assert nb_ == 0
    return header(name) + fmt(allv) + desc(name, 512, 100, 256)
```

```python
from ir import *
KA_X, KA_K, KA_V, KA_WQ, KA_WO, KA_BX, KA_WG, KA_WU, KA_WD, KA_C, KA_WMOD, KA_OUT, KA_DBG, KA_WS = [8*i for i in range(14)]
WS_MOD = 0
WS_H   = 0x100000
WS_X1  = 0x500000
WS_H2  = 0x900000
WS_ACT = 0x1000000
WS_O   = 0x2000000
SEQ, DM, NH, DH, FF = 2048, 1024, 32, 128, 3584

def srd(q, dst, src, off=0, size=0xffffffff):
    if off == 0:
        q.e("s_mov_b32 s%d, s%d" % (dst, src)); q.e("s_mov_b32 s%d, s%d" % (dst + 1, src + 1))
    else:
        o = off if isinstance(off, str) else "0x%x" % off
        q.e("s_add_u32 s%d, s%d, %s" % (dst, src, o)); q.e("s_addc_u32 s%d, s%d, 0" % (dst + 1, src + 1))
    q.e("s_mov_b32 s%d, 0x%x" % (dst + 2, size)); q.e("s_mov_b32 s%d, 0x20000" % (dst + 3))

def header(name):
    return ".globl %s\n.p2align 8\n.type %s,@function\n%s:\n" % (name, name, name)

def desc(name, vgpr, sgpr, accum, denorm=3):
    return (""".section .rodata,"a"
.p2align 6
.amdhsa_kernel %s
  .amdhsa_next_free_vgpr %d
  .amdhsa_next_free_sgpr %d
  .amdhsa_accum_offset %d
  .amdhsa_group_segment_fixed_size 0
  .amdhsa_kernarg_size 112
  .amdhsa_user_sgpr_count 2
  .amdhsa_user_sgpr_kernarg_segment_ptr 1
  .amdhsa_system_sgpr_workgroup_id_x 1
  .amdhsa_float_denorm_mode_32 %s
.end_amdhsa_kernel
.text
""" % (name, vgpr, sgpr, accum, str(denorm)))

def finish(name, lines, vgpr, sgpr, accum):
    lines, _ = check_hazards(lines, autofix=True, name=name)
    return header(name) + fmt(lines) + desc(name, vgpr, sgpr, accum)

def round_pair(q, p, a_, b_, da=None, db=None):
    q.e("v_cvt_pk_bf16_f32 v%d, v%d, v%d" % (p, a_, b_))
    if da is not None: q.e("v_lshlrev_b32 v%d, 16, v%d" % (da, p))
    if db is not None: q.e("v_and_b32 v%d, 0xffff0000, v%d" % (db, p))

WS_STAMP = 0x8000000
def stamp_begin(q, opts):
    if opts.get("stamp"):
        q.e("s_memrealtime s[96:97]")
        q.e("v_readfirstlane_b32 s95, v0"); q.e("s_nop 0"); q.e("s_lshr_b32 s95, s95, 6")
def stamp_end(q, opts, kidx, wsptr):
    if opts.get("stamp"):
        e = q.e
        e("s_waitcnt vmcnt(0)")
        e("s_memrealtime s[98:99]")
        e("s_waitcnt lgkmcnt(0)")
        srd(q, 88, wsptr, WS_STAMP, 0x800000)
        e("v_mov_b32 v2, s96"); e("v_mov_b32 v3, s98")
        e("s_lshl_b32 s92, s2, 4"); e("s_add_u32 s92, s92, s95"); e("s_lshl_b32 s92, s92, 3"); e("s_add_u32 s92, s92, %d" % (kidx * 65536)); e("v_mov_b32 v0, s92")
        e("s_mov_b64 exec, 1")
        e("buffer_store_dwordx2 v[2:3], v0, s[88:91], 0 offen")

def prof(q, opts, i):
    if opts.get("prof"):
        q.e("s_waitcnt lgkmcnt(0)"); q.e("s_memtime s[%d:%d]" % (70 + 2 * i, 71 + 2 * i)); q.e("s_waitcnt lgkmcnt(0)")
def prof_end(q, opts, kidx, wsptr, n, tidreg=255, onlyw0=False):
    if opts.get("prof"):
        e = q.e
        e("s_waitcnt vmcnt(0)"); prof(q, opts, n)
        srd(q, 88, wsptr, WS_STAMP + 0x100000, 0x800000)
        e("v_lshrrev_b32 v4, 6, v%d" % tidreg)
        e("s_nop 1"); e("v_readfirstlane_b32 s93, v4")
        if onlyw0: e("s_and_b32 s93, s93, 3")
        e("s_lshl_b32 s92, s2, 2"); e("s_add_u32 s92, s92, s93"); e("s_lshl_b32 s92, s92, 5"); e("s_add_u32 s92, s92, %d" % (kidx * 65536)); e("v_mov_b32 v0, s92")
        e("s_mov_b64 s[86:87], exec"); e("s_mov_b64 exec, 1")
        for i in range(1, n + 1):
            e("s_sub_u32 s93, s%d, s%d" % (70 + 2 * i, 70 + 2 * (i - 1))); e("v_mov_b32 v2, s93")
            e("buffer_store_dword v2, v0, s[88:91], 0 offen offset:%d" % (4 * (i - 1)))
            e("s_nop 1")
        e("s_mov_b64 exec, s[86:87]")
```

```python
from common import *
from k_gemm import wave_id, rot_setup, rot_next
import struct, math

S_   = lambda b, qb: (b * 2 + qb) * 16
P_   = lambda b, qb, ks: 64 + ((b * 2 + qb) * 2 + ks) * 4
NEGM = lambda qb: 96 + qb * 16
VKA = 128
VVA = 136
VWA = 140
VKD = 144
VVD = 148
VWD = 149
VH  = 153
TMP = 154
TS  = lambda qb: 170 + qb
LS  = lambda qb: 172 + qb
VT  = 174
VO  = 175
RT  = 176
VPF = 192
AO  = lambda qb, db: (qb * 4 + db) * 16
AH  = lambda slot, ks, qb: slot * 32 + (ks * 2 + qb) * 4
AQ  = lambda qb, s: 128 + (qb * 8 + s) * 4
AK  = lambda s: 192 + s * 4
AV  = lambda i: 224 + i * 4
AW  = lambda st, db: 224 + (st * 4 + db) * 4
QACC = lambda qb, db: (qb * 4 + db) * 16
KRING = 0; VRING = 65536
QSCALE = struct.unpack("<I", struct.pack("<f", math.log2(math.e) / math.sqrt(128.0)))[0]
def fbits(x): return struct.unpack("<I", struct.pack("<f", x))[0]

def mfma32(d, a_, b_, c):
    return "v_mfma_f32_32x32x16_bf16 %s, %s, %s, %s" % (d, a_, b_, c)

def k_attn(name, opts):
    L = name
    BIAS = opts.get("bias", 0)
    THR = fbits(2.0 ** (opts.get("tlog", 64) - BIAS))
    pro = Seq(); e = pro.e
    stamp_begin(pro, opts)
    e("s_cmp_ge_u32 s2, 256"); e("s_cbranch_scc1 L_%s_done" % L)
    if opts.get("prof"): e("v_mov_b32 v255, v0")
    prof(pro, opts, 0)
    e("s_load_dwordx2 s[4:5], s[0:1], %d" % KA_WS)
    e("s_load_dwordx4 s[8:11], s[0:1], %d" % KA_K)
    e("s_load_dwordx2 s[6:7], s[0:1], %d" % KA_WQ)
    e("v_mov_b32 v%d, v0" % VT)
    wave_id(pro, 36, 1)
    e("s_and_b32 s42, s2, 3"); e("s_lshl_b32 s42, s42, 3"); e("s_bfe_u32 s60, s2, 0x30003"); e("s_add_u32 s37, s42, s60")
    e("s_bfe_u32 s42, s2, 0x10002"); e("s_lshl_b32 s42, s42, 2"); e("s_lshr_b32 s61, s2, 6"); e("s_add_u32 s38, s42, s61")
    X = TMP
    e("v_and_b32 v%d, 63, v%d" % (X, VT))
    e("v_lshlrev_b32 v%d, 4, v%d" % (VH, X))
    e("v_lshrrev_b32 v%d, 4, v%d" % (X + 1, X)); e("v_and_b32 v%d, 15, v%d" % (X + 2, X))
    e("s_lshl_b32 s42, s36, 4")
    e("v_lshlrev_b32 v%d, 2, v%d" % (X + 4, X + 1)); e("v_xor_b32 v%d, v%d, v%d" % (X + 4, X + 4, X + 2))
    e("v_add_u32 v%d, s42, v%d" % (X + 5, X + 1)); e("v_lshlrev_b32 v%d, 13, v%d" % (X + 3, X + 5))
    e("v_lshl_add_u32 v%d, v%d, 4, v%d" % (VWD, X + 4, X + 3))
    for jj in range(1, 4): e("v_add_u32 v%d, %d, v%d" % (VWD + jj, jj * 31744, VWD))
    e("v_lshlrev_b32 v%d, 8, v%d" % (X + 3, X + 5))
    e("v_lshl_add_u32 v%d, v%d, 4, v%d" % (VVD, X + 4, X + 3))
    for jj in range(4):
        e("v_add_u32 v%d, %d, v%d" % (X + 4, 4 * jj, X + 1)); e("v_xor_b32 v%d, v%d, v%d" % (X + 4, X + 4, X + 2))
        e("v_lshl_add_u32 v%d, v%d, 4, v%d" % (VKD + jj, X + 4, X + 3))
    for sl in range(4):
        e("s_lshl_b32 s%d, s36, 12" % (44 + sl)); e("s_add_u32 s%d, s%d, %d" % (44 + sl, 44 + sl, KRING + sl * 16384))
        e("s_add_u32 s%d, s%d, %d" % (48 + sl, 44 + sl, VRING))
    e("s_lshl_b32 s42, s61, 1"); e("s_add_u32 s62, s60, s42")
    if not opts.get("rot", 1): e("s_mov_b32 s62, 0"); e("s_mov_b32 s61, 0")
    e("s_waitcnt lgkmcnt(0)")
    e("s_lshl_b32 s42, s38, 3"); e("s_lshl_b32 s43, s36, 1"); e("s_add_u32 s57, s42, s43")
    e("s_lshl_b32 s43, s57, 16"); e("s_add_u32 s43, s43, 0x%x" % WS_H)
    srd(pro, 24, 4, "s43", 65536); e("s_add_u32 s43, s43, 65536"); srd(pro, 28, 4, "s43", 65536)
    e("s_lshl_b32 s42, s37, 8")
    srd(pro, 20, 6, "s42", 0); e("s_sub_u32 s22, %d, s42" % (1024 * 8192))
    e("s_lshl_b32 s42, s37, 19")
    srd(pro, 12, 8, "s42", 524288); srd(pro, 16, 10, "s42", 524288)
    srd(pro, 32, 4, WS_O, SEQ * 4096 * 2)
    if opts.get("pf", 1):
        e("s_load_dwordx2 s[84:85], s[0:1], %d" % KA_WO)
        e("s_load_dwordx4 s[8:11], s[0:1], %d" % KA_WG)
        e("s_load_dwordx2 s[6:7], s[0:1], %d" % KA_WD)
        e("s_waitcnt lgkmcnt(0)")

    VFX = 194
    if opts.get("fusepre", 1):
        srd(pro, 88, 4, 0, 0x40000)
        e("s_lshl_b32 s42, s2, 6"); e("v_lshl_add_u32 v%d, v%d, 2, s42" % (VFX, X))
        e("v_cmp_gt_u32 vcc, 16, v%d" % VT); e("v_mov_b32 v%d, 0x7f000000" % (VFX + 1)); e("v_cndmask_b32 v%d, v%d, v%d, vcc" % (VFX, VFX + 1, VFX))
        e("s_mov_b32 s42, 0x30000"); e("s_mov_b32 s43, 0x34000")
        e("buffer_load_dword v%d, v%d, s[88:91], s42 offen" % (VFX + 1, VFX)); e("buffer_load_dword v%d, v%d, s[88:91], s43 offen" % (VFX + 2, VFX))
    def qrot(q):
        rot_next(q, 63, 62, 8, 64)
        q.e("s_lshl_b32 s39, s64, 12"); q.e("s_lshl_b32 s40, s64, 19")
    def krot(q, cnt, dst):
        rot_next(q, cnt, 61, 4, 64)
        q.e("s_lshl_b32 s%d, s64, 14" % dst)
    def k_dma(q, T, jj):
        q.vm("buffer_load_dwordx4 v%d, s[12:15], s52 offen offset:%d lds" % (VKD + jj, jj * 1024), ("K", T, jj))
    def v_dma(q, T, jj):
        q.vm("buffer_load_dwordx4 v%d, s[16:19], s53 offen offset:%d lds" % (VVD, jj * 1024), ("V", T, jj))
    def k_pre(q, T): q.e("s_mov_b32 m0, s%d" % (44 + (T & 3))); krot(q, 65, 52)
    def v_pre(q, T): q.e("s_mov_b32 m0, s%d" % (48 + (T & 3))); krot(q, 66, 53)
    def w_dma(q, t, jj):
        if jj == 0: q.e("s_mov_b32 m0, s%d" % (48 + (t & 3))); q.e("s_nop 0")
        q.vm("buffer_load_dwordx4 v%d, s[20:23], s40 offen offset:%d lds" % (VWD + jj, jj * 1024), ("W", t, jj))
    def h_load(q, t, ks, qb):
        r = AH(t & 3, ks, qb)
        q.vm("buffer_load_dwordx4 a[%d:%d], v%d, s[%d:%d], s39 offen offset:%d" % (r, r + 3, VH, 24 + 4 * qb, 27 + 4 * qb, ks * 1024), ("h", t, ks, qb))
    def w_read(q, t, ks, db, tt):
        r = AW(ks & 1, db) + 2 * tt
        q.lds("ds_read_b64_tr_b16 a[%d:%d], v%d offset:%d" % (r, r + 1, VWA + db, (t & 3) * 16384 + ks * 4096 + tt * 1024), ("w", t, ks, db, tt))

    QORD = [("W", 0), ("h", 0, 0), ("W", 1), ("h", 0, 1), ("W", 2), ("h", 1, 0), ("W", 3), ("h", 1, 1), ("h", 2, 0), ("h", 2, 1), ("h", 3, 0), ("h", 3, 1)]
    def q_issue(q, t, op):
        if op[0] == "h": h_load(q, t, op[1], op[2])
        else: w_dma(q, t, op[1])
    e("s_mov_b32 s63, 0"); e("s_mov_b32 s65, 0"); e("s_mov_b32 s66, 0")
    QD = 2
    for t in range(QD):
        qrot(pro)
        for op in QORD: q_issue(pro, t, op)
    qrot(pro)
    e("v_and_b32 v%d, 31, v%d" % (X + 1, X)); e("v_lshrrev_b32 v%d, 5, v%d" % (X + 2, X))
    e("v_and_b32 v%d, 15, v%d" % (X + 3, X)); e("v_xor_b32 v%d, v%d, v%d" % (X + 3, X + 3, X + 2))
    e("v_lshlrev_b32 v%d, 8, v%d" % (X + 4, X + 1)); e("v_lshl_add_u32 v%d, v%d, 4, v%d" % (VKA, X + 3, X + 4))
    for s_ in range(1, 8): e("v_xor_b32 v%d, %d, v%d" % (VKA + s_, s_ << 5, VKA))
    e("v_bfe_u32 v%d, v%d, 2, 2" % (X + 1, X))
    e("v_lshrrev_b32 v%d, 5, v%d" % (X + 2, X))
    e("v_bfe_u32 v%d, v%d, 4, 1" % (X + 3, X))
    e("v_and_b32 v%d, 3, v%d" % (X + 4, X))
    e("v_lshl_add_u32 v%d, v%d, 2, v%d" % (X + 5, X + 2, X + 1)); e("v_lshlrev_b32 v%d, 8, v%d" % (X + 5, X + 5))
    e("v_lshl_add_u32 v%d, v%d, 6, v%d" % (X + 5, X + 1, X + 5)); e("v_lshl_add_u32 v%d, v%d, 5, v%d" % (X + 5, X + 3, X + 5))
    e("v_lshl_add_u32 v%d, v%d, 3, v%d" % (X + 5, X + 4, X + 5)); e("v_add_u32 v%d, %d, v%d" % (VVA, VRING, X + 5))
    for db in range(1, 4): e("v_xor_b32 v%d, %d, v%d" % (VVA + db, db << 6, VVA))
    e("v_lshl_add_u32 v%d, v%d, 3, v%d" % (X + 5, X + 2, X + 1)); e("v_lshlrev_b32 v%d, 8, v%d" % (X + 5, X + 5))
    e("v_lshl_add_u32 v%d, v%d, 6, v%d" % (X + 5, X + 1, X + 5)); e("v_lshl_add_u32 v%d, v%d, 5, v%d" % (X + 5, X + 3, X + 5))
    e("v_and_b32 v%d, 1, v%d" % (X + 6, X + 4)); e("v_lshl_add_u32 v%d, v%d, 4, v%d" % (X + 5, X + 6, X + 5))
    e("v_lshrrev_b32 v%d, 1, v%d" % (X + 6, X + 4)); e("v_lshl_add_u32 v%d, v%d, 3, v%d" % (X + 5, X + 6, X + 5))
    e("v_add_u32 v%d, %d, v%d" % (VWA, VRING, X + 5))
    for db in range(1, 4): e("v_xor_b32 v%d, %d, v%d" % (VWA + db, db << 6, VWA))
    e("s_lshl_b32 s42, s57, 1")
    e("v_bfe_u32 v%d, v%d, 4, 1" % (X + 1, X)); e("v_add_u32 v%d, s42, v%d" % (X + 1, X + 1)); e("v_lshlrev_b32 v%d, 17, v%d" % (X + 1, X + 1))
    e("v_and_b32 v%d, 15, v%d" % (X + 2, X)); e("v_lshl_add_u32 v%d, v%d, 4, v%d" % (X + 1, X + 2, X + 1))
    e("v_lshrrev_b32 v%d, 5, v%d" % (X + 2, X)); e("v_lshl_add_u32 v%d, v%d, 8, v%d" % (X + 1, X + 2, X + 1))
    e("s_lshl_b32 s42, s37, 12"); e("v_add_u32 v%d, s42, v%d" % (VO, X + 1))
    for i in range(128): e("v_mov_b32 v%d, 0" % i)
    prof(pro, opts, 1)
    pro.wait_vm(("W", 0, 3)); e("s_barrier")
    for db in range(4):
        for tt in range(2): w_read(pro, 0, 0, db, tt)
    e("s_mov_b32 s41, 4")
    pro.label("L_%s_qloop" % L)
    def qbody(it):
        q = Seq()
        for ts in range(4):
            t = it * 4 + ts
            vm = list(QORD)
            tq = Seq(); qrot(tq); qs = [it.text for it in tq.items]
            for ks in range(4):
                nxt = (t + 1, 0) if ks == 3 else (t, ks + 1)
                q.wait_vm(("h", t, ks, 1))
                rd = [(db, tt) for db in range(4) for tt in range(2)]
                n = 0
                for db in range(4):
                    for qb in range(2):
                        A = QACC(qb, db)
                        if qb == 0: q.wait_lgkm(("w", t, ks, db, 1))
                        if ks == 3 and n == 0:
                            q.wait_vm(("W", t + 1, 3)); q.e("s_barrier")
                        q.e(mfma32(v(A, 16), a(AW(ks & 1, db), 4), a(AH(t & 3, ks, qb), 4), v(A, 16)))
                        x = rd.pop(0); w_read(q, nxt[0], nxt[1], x[0], x[1])
                        g = ks * 8 + n
                        if g >= 24 and qs: q.e(qs.pop(0))
                        if g % 2 == 0 and vm and g <= 22: q_issue(q, t + QD, vm.pop(0))
                        n += 1
            assert not vm and not qs
        q.e("s_sub_u32 s41, s41, 1"); q.e("s_cmp_lg_u32 s41, 0"); q.e("s_cbranch_scc1 L_%s_qloop" % L)
        return q
    qb_ = [qbody(i) for i in range(3)]
    mid = Seq(); e = mid.e
    e("s_waitcnt vmcnt(0) lgkmcnt(0)"); e("s_barrier")
    prof(mid, opts, 2)
    if opts.get("fusepre", 1):
        e("v_add_f32 v%d, v%d, v%d" % (VFX + 1, VFX + 1, VFX + 2)); e("v_cvt_pk_bf16_f32 v%d, v%d, v%d" % (VFX + 1, VFX + 1, VFX + 1)); e("v_lshlrev_b32 v%d, 16, v%d" % (VFX + 1, VFX + 1))
        srd(mid, 88, 4, 0, 0x40000)
        e("s_mov_b32 s42, 8192")
        e("buffer_store_dword v%d, v%d, s[88:91], s42 offen" % (VFX + 1, VFX))
    for T in range(3):
        k_pre(mid, T)
        for jj in range(4): k_dma(mid, T, jj)
        v_pre(mid, T)
        for jj in range(4): v_dma(mid, T, jj)
    e("s_mov_b32 s54, 0x%x" % QSCALE)
    for qb in range(2):
        for db in range(4):
            A = QACC(qb, db)
            for hh in range(2):
                for r in range(0, 8, 2): e("v_pk_mul_f32 v[%d:%d], v[%d:%d], s[54:55] op_sel_hi:[1,0]" % (A + 8 * hh + r, A + 8 * hh + r + 1, A + 8 * hh + r, A + 8 * hh + r + 1))
                for r in range(4): e("v_cvt_pk_bf16_f32 v%d, v%d, v%d" % (TMP + 4 * hh + r, A + 8 * hh + 2 * r, A + 8 * hh + 2 * r + 1))
                for r in range(4): e("v_accvgpr_write_b32 a%d, v%d" % (AQ(qb, 2 * db + hh) + r, TMP + 4 * hh + r))
    for qb in range(2): e("v_mov_b32 v%d, 0" % LS(qb))
    p1, b1, m1 = merge_loop(pro, qb_, mid)

    def k_read(q, j, s_):
        T = j >> 1
        q.lds("ds_read_b128 a[%d:%d], v%d offset:%d" % (AK(s_), AK(s_) + 3, VKA + s_, KRING + (T & 3) * 16384 + (j & 1) * 8192), ("kf", j, s_))
    def v_read(q, j, n):
        i = n >> 1; tt = n & 1; ks = i >> 2; db = i & 3
        T = j >> 1; r = AV(i) + 2 * tt
        q.lds("ds_read_b64_tr_b16 a[%d:%d], v%d offset:%d" % (r, r + 1, VVA + db, (T & 3) * 16384 + (j & 1) * 8192 + ks * 4096 + tt * 2048), ("vf", j, n))
    def qk(j, s_, qb, first_c):
        D = v(S_(j & 1, qb), 16)
        return mfma32(D, a(AK(s_), 4), a(AQ(qb, s_), 4), first_c if s_ == 0 else D)
    def pv(j, i, qb):
        O = a(AO(qb, i & 3), 16)
        return mfma32(O, a(AV(i), 4), v(P_(j & 1, qb, i >> 2), 4), O)
    ap = Seq(); e = ap.e
    prof(ap, opts, 3)
    e("s_waitcnt vmcnt(20)")
    e("s_barrier")
    for s_ in range(8): k_read(ap, 0, s_)
    e("s_waitcnt lgkmcnt(0)")
    n = 0
    for qb in range(2):
        for s_ in range(8):
            e(qk(0, s_, qb, "0"))
            if qb == 1: k_read(ap, 1, s_)
            for z in range(8): e("v_accvgpr_write_b32 a%d, 0" % (n * 8 + z))
            n += 1
    e("s_waitcnt vmcnt(16)"); e("s_barrier")
    for n in range(8): v_read(ap, 0, n)
    def rowmax(q, b, qb, dst):
        S0 = S_(b, qb)
        q.e("v_max3_f32 v%d, v%d, v%d, v%d" % (dst, S0, S0 + 1, S0 + 2))
        for r in range(3, 15, 2): q.e("v_max3_f32 v%d, v%d, v%d, v%d" % (dst, dst, S0 + r, S0 + r + 1))
        q.e("v_max_f32 v%d, v%d, v%d" % (dst, dst, S0 + 15))
        q.e("v_mov_b32 v%d, v%d" % (dst + 1, dst))
        q.e("v_permlane32_swap_b32 v%d, v%d" % (dst, dst + 1))
        q.e("v_max_f32 v%d, v%d, v%d" % (dst, dst, dst + 1))
    def softmax_plain(q, b, qb, T0, nel=16):
        for r in range(0, nel, 2):
            t0 = T0 + (r % 4)
            q.e("v_exp_f32 v%d, v%d" % (t0, S_(b, qb) + r)); q.e("v_exp_f32 v%d, v%d" % (t0 + 1, S_(b, qb) + r + 1)); q.e("s_nop 0")
            if r == 0: q.e("v_add_f32 v%d, v%d, v%d" % (TS(qb), t0, t0 + 1))
            else:
                q.e("v_add_f32 v%d, v%d, v%d" % (TS(qb), TS(qb), t0)); q.e("v_add_f32 v%d, v%d, v%d" % (TS(qb), TS(qb), t0 + 1))
            q.e("v_cvt_pk_bf16_f32 v%d, v%d, v%d" % (P_(b, qb, r // 8) + (r % 8) // 2, t0, t0 + 1))
    for qb in range(2):
        rowmax(ap, 0, qb, RT + 2 * qb)
        if BIAS: e("v_add_f32 v%d, 0x%x, v%d" % (RT + 2 * qb, fbits(float(BIAS)), RT + 2 * qb))
        for r in range(16): e("v_sub_f32 v%d, v%d, v%d" % (S_(0, qb) + r, S_(0, qb) + r, RT + 2 * qb))
        for r in range(16): e("v_sub_f32 v%d, 0, v%d" % (NEGM(qb) + r, RT + 2 * qb))
    softmax_plain(ap, 0, 0, RT + 4, 14)
    e("v_exp_f32 v%d, v%d" % (TMP + 6, S_(0, 0) + 14)); e("v_exp_f32 v%d, v%d" % (TMP + 7, S_(0, 0) + 15))
    if opts.get("pf", 1):
        e("s_lshl_b32 s42, s2, 2"); e("s_add_u32 s42, s42, s36"); e("s_lshl_b32 s42, s42, 13")
        e("v_and_b32 v%d, 63, v%d" % (VPF + 1, VT)); e("v_lshlrev_b32 v%d, 7, v%d" % (VPF, VPF + 1)); e("v_add_u32 v%d, s42, v%d" % (VPF, VPF))
        e("v_cmp_gt_u32 vcc, 16, v%d" % (VPF + 1)); e("v_mov_b32 v%d, 0x7f000000" % (VPF + 1)); e("v_cndmask_b32 v%d, v%d, v%d, vcc" % (VPF, VPF + 1, VPF))
        e("s_mov_b32 s69, 4096")
        e("s_mov_b32 s86, 0x800000"); e("s_mov_b32 s87, 0x20000")
        e("s_mov_b32 s68, 0x700000")
    e("s_mov_b32 s41, 8"); e("s_mov_b32 s55, 0x%x" % THR)
    e("s_waitcnt lgkmcnt(0)")
    ap.label("L_%s_loop" % L)

    def step(q, j):
        T = j >> 1
        def elem(g):
            jj = j
            while g < 0: g += 32; jj -= 1
            return (jj, 1, g) if g < 16 else (jj + 1, 0, g - 16)
        tmp = lambda g: TMP + (g % 8)
        tq = Seq(); krot(tq, 65 if j % 2 == 0 else 66, 52 if j % 2 == 0 else 53); salu = [it.text for it in tq.items]
        for g in range(32):
            if g < 16:
                qb, s_ = g >> 3, g & 7
                if g == 0: q.wait_lgkm(("kf", j + 1, 7))
                q.wait_lgkm(("kf", j + 1, s_))
                if g == 8 and j % 2 == 0:
                    q.wait_vm(("K", T + 1, 3), ("V", T + 1, 3))
                    if not opts.get("nobar"): q.e("s_barrier")
                q.e(qk(j + 1, s_, qb, v(NEGM(qb), 16)))
            else:
                qb, i = (g - 16) >> 3, (g - 16) & 7
                if g == 16: q.wait_lgkm(("vf", j, 15))
                q.wait_lgkm(("vf", j, 2 * i + 1))
                q.e(pv(j, i, qb))
            if g < 8: v_read(q, j, 8 + g)
            elif g < 16:
                k_read(q, j + 2, g - 8)
                if g >= 9 and salu: q.e(salu.pop(0))
            elif g < 24:
                if g == 16: q.e("s_mov_b32 m0, s%d" % ((44 if j % 2 == 0 else 48) + ((T + 3) & 3)))
                if opts.get("pf", 1):
                    if g == 18 and j % 2 == 1:
                        q.vm("buffer_load_dword v%d, v%d, s[84:87], 0 offen offset:%d" % (VPF + 1, VPF, ((j % 8) // 2) * 2048 % 4096), ("pf", j)) if (j % 8) < 4 else \
                        q.vm("buffer_load_dword v%d, v%d, s[84:87], s69 offen offset:%d" % (VPF + 1, VPF, (((j % 8) // 2) - 2) * 2048), ("pf", j))
                    if g == 20 and j % 8 == 7:
                        for x in ["s_mov_b32 s84, s8", "s_mov_b32 s85, s9", "s_mov_b32 s8, s10", "s_mov_b32 s9, s11"]: q.e(x)
                    if g == 22 and j % 8 == 7:
                        for x in ["s_mov_b32 s10, s6", "s_mov_b32 s11, s7", "s_cmp_gt_u32 s41, 5", "s_cselect_b32 s86, s68, 0"]: q.e(x)
                if g in (17, 19, 21, 23):
                    jj = (g - 17) // 2
                    if opts.get("nodma"): q.items.append(Item("; x", "vm", tag=("K" if j % 2 == 0 else "V", T + 3, jj)))
                    else: (k_dma if j % 2 == 0 else v_dma)(q, T + 3, jj)
            else: v_read(q, j + 1, g - 24)
            jj, eq, r = elem(g - 2)
            if not opts.get("novalu"):
                if r == 1: q.e("v_add_f32 v%d, v%d, v%d" % (TS(eq), tmp(g - 3), tmp(g - 2)))
                elif r > 1: q.e("v_add_f32 v%d, v%d, v%d" % (TS(eq), TS(eq), tmp(g - 2)))
                if r % 2 == 1: q.e("v_cvt_pk_bf16_f32 v%d, v%d, v%d" % (P_(jj & 1, eq, r // 8) + (r % 8) // 2, tmp(g - 3), tmp(g - 2)))
            if g in (10, 20):
                cq = 0 if g == 10 else 1
                site = "L_%s_r%d_%d" % (L, j % 8, cq)
                q.e("v_cmp_lt_f32 vcc, s55, v%d" % TS(cq))
                q.e("s_cbranch_vccnz %s" % site)
                q.label(site + "_back")
            if g in (12, 22):
                cq = 0 if g == 12 else 1
                q.e("v_add_f32 v%d, v%d, v%d" % (LS(cq), LS(cq), TS(cq)))
            jj, eq, r = elem(g)
            if not opts.get("novalu"): q.e("v_exp_f32 v%d, v%d" % (tmp(g), S_(jj & 1, eq) + r))
    pre = Seq()
    for T in range(3):
        for jj in range(4): pre.vm("", ("K", T, jj))
        for jj in range(4): pre.vm("", ("V", T, jj))
    for n in range(8): pre.lds("", ("kf", 1, n))
    for n in range(8): pre.lds("", ("vf", 0, n))
    def abody(it):
        q = Seq()
        for js in range(8): step(q, it * 8 + js)
        q.e("s_sub_u32 s41, s41, 1"); q.e("s_cmp_lg_u32 s41, 0"); q.e("s_cbranch_scc1 L_%s_loop" % L)
        return q
    ab = [abody(i) for i in range(3)]
    ae = Seq(); e = ae.e
    prof(ae, opts, 4)
    for qb in range(2): e("v_mov_b32 v%d, v%d" % (RT + qb, LS(qb)))
    for qb in range(2): e("v_permlane32_swap_b32 v%d, v%d" % (LS(qb), RT + qb))
    for qb in range(2): e("v_add_f32 v%d, v%d, v%d" % (LS(qb), LS(qb), RT + qb))
    for qb in range(2): e("v_rcp_f32 v%d, v%d" % (LS(qb), LS(qb)))
    e("s_mov_b32 s56, 0x40000")
    n = 0
    for qb in range(2):
        for db in range(4):
            B = (n % 2) * 32; n += 1
            for r in range(16): e("v_accvgpr_read_b32 v%d, a%d" % (B + r, AO(qb, db) + r))
            for r in range(16): e("v_mul_f32 v%d, v%d, v%d" % (B + r, B + r, LS(qb)))
            for (dst, src) in ((16, 0), (17, 2), (18, 8), (19, 10), (20, 4), (21, 6), (22, 12), (23, 14)):
                e("v_cvt_pk_bf16_f32 v%d, v%d, v%d" % (B + dst, B + src, B + src + 1))
            so = "s56" if qb else "0"
            e("buffer_store_dwordx4 v[%d:%d], v%d, s[32:35], %s offen offset:%d %s" % (B + 16, B + 19, VO, so, db * 1024, opts.get("ostfl", "sc1")))
            e("buffer_store_dwordx4 v[%d:%d], v%d, s[32:35], %s offen offset:%d %s" % (B + 20, B + 23, VO, so, db * 1024 + 512, opts.get("ostfl", "sc1")))
    prof(ae, opts, 5)
    prof_end(ae, opts, 2, 4, 6)
    stamp_end(ae, opts, 2, 4)
    ae.label("L_%s_done" % L); e("s_endpgm")
    _, b2, e2 = merge_loop(pre, ab, ae)
    p2 = render(ap)

    rare = []
    for par in range(2):
        for qb in range(2):
            q = Seq(); e = q.e
            q.label("L_%s_rare%d_%d" % (L, par, qb))
            e("s_nop 15")
            D = RT + 8
            rowmax(q, par, qb, D)
            if BIAS: e("v_add_f32 v%d, 0x%x, v%d" % (D, fbits(float(BIAS)), D))
            e("v_max_f32 v%d, 0, v%d" % (D, D))
            for r in range(16): e("v_sub_f32 v%d, v%d, v%d" % (S_(par, qb) + r, S_(par, qb) + r, D))
            for r in range(16): e("v_sub_f32 v%d, v%d, v%d" % (S_(par ^ 1, qb) + r, S_(par ^ 1, qb) + r, D))
            for r in range(16): e("v_sub_f32 v%d, v%d, v%d" % (NEGM(qb) + r, NEGM(qb) + r, D))
            e("v_sub_f32 v%d, 0, v%d" % (D + 1, D)); e("v_exp_f32 v%d, v%d" % (D + 1, D + 1)); e("s_nop 0")
            e("v_mul_f32 v%d, v%d, v%d" % (LS(qb), LS(qb), D + 1))
            for db in range(4):
                for r in range(16):
                    e("v_accvgpr_read_b32 v%d, a%d" % (RT + (r % 4), AO(qb, db) + r))
                    e("v_mul_f32 v%d, v%d, v%d" % (RT + (r % 4), RT + (r % 4), D + 1))
                    e("v_accvgpr_write_b32 a%d, v%d" % (AO(qb, db) + r, RT + (r % 4)))
            softmax_plain(q, par, qb, RT + 4)
            e("s_nop 7")
            e("s_setpc_b64 s[58:59]")
            rare += render(q)
    stubs = []
    for js in range(8):
        for cq in range(2):
            stubs += ["L_%s_r%d_%d:" % (L, js, cq), "s_call_b64 s[58:59], L_%s_rare%d_%d" % (L, js & 1, cq), "s_branch L_%s_r%d_%d_back" % (L, js, cq)]
    main, _ = check_hazards(p1 + b1 + m1 + p2 + b2 + e2, autofix=True, name=name)
    for nm, b in (("q", b1), ("a", b2)):
        _, nb_ = check_hazards([l for l in b if not l.endswith(":")] * 2, autofix=False, name=name + " backedge " + nm)
        assert nb_ == 0
    rare, _ = check_hazards(rare, autofix=True, name=name + " rare")
    return header(name) + fmt(main) + fmt(stubs) + fmt(rare) + desc(name, 512, 100, 256, denorm=(0 if BIAS else 3))
```

```python
from common import *

import struct
def fhex(x): return "0x%08x" % struct.unpack("<I", struct.pack("<f", x))[0]
def wave_id(q, dst, tmp):
    q.e("v_lshrrev_b32 v%d, 6, v0" % tmp)
    q.e("v_readfirstlane_b32 s%d, v%d" % (dst, tmp))

def rot_setup(q): pass
def rot_next(q, cnt, rho, win, dst):
    q.e("s_add_u32 s%d, s%d, s%d" % (dst, cnt, rho)); q.e("s_and_b32 s%d, s%d, %d" % (dst, dst, win - 1))
    q.e("s_andn2_b32 s%d, s%d, %d" % (dst + 3, cnt, win - 1)); q.e("s_or_b32 s%d, s%d, s%d" % (dst, dst, dst + 3))
    q.e("s_add_u32 s%d, s%d, 1" % (cnt, cnt))

def k_n64(name, down, opts):
    K = 3584 if down else 4096
    KB = K // 32; NST = K // 64; NIT = NST // 4
    D = opts.get("n64d", 3)
    kidx = 6 if down else 3
    L = name
    ACC = 16; RES = 48; GATE = 64; WF = 80; AR = 112
    acc = lambda tb, nb: ACC + (tb * 4 + nb) * 4
    wf = lambda st, nb: WF + (st * 4 + nb) * 4
    ar = lambda slot, i, tb: AR + ((slot * 2 + i) * 2 + tb) * 4
    pro = Seq(); e = pro.e
    stamp_begin(pro, opts)
    e("s_cmp_ge_u32 s2, 256"); e("s_cbranch_scc1 L_%s_done" % L)
    prof(pro, opts, 0)
    if opts.get("prof"): e("v_mov_b32 v255, v0")
    e("s_load_dwordx2 s[4:5], s[0:1], %d" % KA_WS)
    e("s_load_dwordx2 s[6:7], s[0:1], %d" % (KA_WD if down else KA_WO))
    e("s_load_dwordx2 s[8:9], s[0:1], %d" % (KA_OUT if down else KA_X))
    wave_id(pro, 36, 1)
    e("s_and_b32 s42, s2, 3"); e("s_lshl_b32 s42, s42, 2"); e("s_bfe_u32 s60, s2, 0x20003"); e("s_add_u32 s37, s42, s60")
    e("s_bfe_u32 s42, s2, 0x10002"); e("s_lshl_b32 s42, s42, 3"); e("s_lshr_b32 s61, s2, 5"); e("s_add_u32 s38, s42, s61")
    e("s_lshl_b32 s42, s60, 1"); e("s_add_u32 s62, s61, s42")
    if not opts.get("rot", 1): e("s_mov_b32 s62, 0")
    e("v_and_b32 v10, 63, v0")
    e("v_lshlrev_b32 v1, 4, v10")
    e("v_lshrrev_b32 v11, 3, v10"); e("s_lshl_b32 s42, s36, 4"); e("v_add_u32 v11, s42, v11"); e("v_lshlrev_b32 v11, 11, v11")
    e("v_and_b32 v12, 7, v10"); e("v_bfe_u32 v13, v10, 4, 2"); e("v_lshlrev_b32 v13, 1, v13"); e("v_xor_b32 v12, v12, v13")
    e("v_lshl_add_u32 v2, v12, 4, v11")
    e("v_add_u32 v3, 15360, v2")
    e("s_lshl_b32 s44, s36, 11")
    for sl in range(1, 4): e("s_add_u32 s%d, s44, %d" % (44 + sl, sl * 8192))
    e("s_waitcnt lgkmcnt(0)")
    e("s_lshl_b32 s42, s37, 3"); e("s_lshl_b32 s43, s36, 1"); e("s_add_u32 s42, s42, s43"); e("s_mul_i32 s42, s42, %d" % (KB * 1024))
    e("s_add_u32 s42, s42, 0x%x" % (WS_ACT if down else WS_O))
    srd(pro, 12, 4, "s42", KB * 1024)
    e("s_add_u32 s42, s42, %d" % (KB * 1024))
    srd(pro, 16, 4, "s42", KB * 1024)
    e("s_lshl_b32 s42, s38, 7")
    srd(pro, 20, 6, "s42", 0); e("s_sub_u32 s22, %d, s42" % (K * 2048))
    e("s_mov_b32 s63, 0")

    def rot(q):
        rot_next(q, 63, 62, opts.get("n64w", 4), 64)
        q.e("s_lshl_b32 s39, s64, 11"); q.e("s_lshl_b32 s40, s64, 17")
    def act_load(q, t, i, tb):
        r = ar(t & 3, i, tb)
        q.vm("buffer_load_dwordx4 v[%d:%d], v1, s[%d:%d], s39 offen offset:%d" % (r, r + 3, 12 + 4 * tb, 15 + 4 * tb, i * 1024), ("act", t, i, tb))
    def w_dma(q, t, jj):
        if jj == 0: q.e("s_mov_b32 m0, s%d" % (44 + (t & 3))); q.e("s_nop 0")
        q.vm("buffer_load_dwordx4 v%d, s[20:23], s40 offen offset:%d lds" % (2 + jj, jj * 1024), ("W", t, jj))
    ORD = [("W", 0), ("a", 0, 0), ("a", 0, 1), ("W", 1), ("a", 1, 0), ("a", 1, 1)]
    def issue(q, t, op):
        if op[0] == "W": w_dma(q, t, op[1])
        else: act_load(q, t, op[1], op[2])
    def w_read(q, t, i, nb, tt):
        r = wf(i & 1, nb) + 2 * tt
        q.lds("ds_read_b64_tr_b16 v[%d:%d], v%d offset:%d" % (r, r + 1, 6 + nb, (t & 3) * 8192 + i * 4096 + tt * 2048), ("wf", t, i, nb, tt))
    for t in range(D):
        rot(pro)
        for op in ORD: issue(pro, t, op)
    rot(pro)
    e("v_lshrrev_b32 v11, 2, v10")
    e("v_lshlrev_b32 v12, 7, v11"); e("v_and_b32 v13, 3, v10"); e("v_lshl_add_u32 v12, v13, 3, v12")
    e("v_bfe_u32 v13, v11, 1, 2"); e("v_lshl_add_u32 v6, v13, 5, v12")
    for nb in range(1, 4): e("v_xor_b32 v%d, %d, v6" % (6 + nb, nb << 5))
    if down:
        srd(pro, 24, 4, WS_X1, SEQ * DM * 2); srd(pro, 28, 8, 0, SEQ * DM * 2)
    else:
        srd(pro, 24, 8, 0, SEQ * DM * 2); srd(pro, 28, 4, WS_X1, SEQ * DM * 2)
    srd(pro, 32, 4, WS_MOD, 6144 * 4)
    e("s_lshl_b32 s42, s37, 7"); e("s_lshl_b32 s43, s36, 5"); e("s_add_u32 s42, s42, s43")
    e("v_and_b32 v11, 15, v10"); e("v_add_u32 v11, s42, v11"); e("v_lshlrev_b32 v11, 11, v11")
    e("v_lshrrev_b32 v12, 4, v10"); e("v_lshl_add_u32 v11, v12, 3, v11"); e("s_lshl_b32 s42, s38, 7"); e("v_add_u32 v14, s42, v11")
    e("s_lshl_b32 s42, s38, 8"); e("s_add_u32 s42, s42, %d" % ((5 if down else 2) * 4096)); e("v_lshlrev_b32 v12, 4, v12"); e("v_add_u32 v15, s42, v12")
    e("s_mov_b32 s48, 0x8000")
    for tb in range(2):
        for nb in range(4):
            pro.vm("buffer_load_dwordx2 v[%d:%d], v14, s[24:27], %s offen offset:%d" % (RES + (tb * 4 + nb) * 2, RES + (tb * 4 + nb) * 2 + 1, "s48" if tb else "0", nb * 32), ("res", tb, nb))
    for nb in range(4):
        pro.vm("buffer_load_dwordx4 v[%d:%d], v15, s[32:35], 0 offen offset:%d" % (GATE + nb * 4, GATE + nb * 4 + 3, nb * 64), ("gate", nb))
    for i in range(32): e("v_mov_b32 v%d, 0" % (ACC + i))
    prof(pro, opts, 1)
    pro.wait_vm(("W", 0, 1)); e("s_barrier")
    prof(pro, opts, 2)
    for nb in range(4):
        for tt in range(2): w_read(pro, 0, 0, nb, tt)
    e("s_mov_b32 s41, %d" % NIT)
    pro.label("L_%s_loop" % L)

    def body(it):
        q = Seq()
        for ts in range(4):
            t = it * 4 + ts
            vm = list(ORD)
            tq = Seq(); rot(tq); sal = [x.text for x in tq.items]
            for i in range(2):
                nxt = (t, 1) if i == 0 else (t + 1, 0)
                q.wait_vm(("act", t, i, 1))
                if i == 1:
                    q.wait_vm(("W", t + 1, 1)); q.e("s_barrier")
                rd = [(nb, tt) for nb in range(4) for tt in range(2)]
                n = 0
                for nb in range(4):
                    for tb in range(2):
                        if tb == 0: q.wait_lgkm(("wf", t, i, nb, 1))
                        q.e("v_mfma_f32_16x16x32_bf16 v[%d:%d], v[%d:%d], v[%d:%d], v[%d:%d]" % (acc(tb, nb), acc(tb, nb) + 3, wf(i & 1, nb), wf(i & 1, nb) + 3, ar(t & 3, i, tb), ar(t & 3, i, tb) + 3, acc(tb, nb), acc(tb, nb) + 3))
                        x = rd.pop(0); w_read(q, nxt[0], nxt[1], x[0], x[1])
                        g = i * 8 + n
                        if g % 2 == 1 and vm: issue(q, t + D, vm.pop(0))
                        if g >= 12:
                            for _ in range(2):
                                if sal: q.e(sal.pop(0))
                        n += 1
            assert not vm and not sal
        q.e("s_sub_u32 s41, s41, 1"); q.e("s_cmp_lg_u32 s41, 0"); q.e("s_cbranch_scc1 L_%s_loop" % L)
        return q
    bodies = [body(i) for i in range(3)]
    epi = Seq(); e = epi.e
    e("s_nop 7")
    prof(epi, opts, 3)
    T = WF
    e("s_waitcnt lgkmcnt(0)")
    epi.wait_vm(("gate", 3))
    for tb in range(2):
        for nb in range(4):
            A = acc(tb, nb); Rr = RES + (tb * 4 + nb) * 2; G = GATE + nb * 4
            T = WF + ((tb * 4 + nb) % 2) * 12
            round_pair(epi, T + 8, A, A + 1, T, T + 1); round_pair(epi, T + 9, A + 2, A + 3, T + 2, T + 3)
            for r in range(4): e("v_mul_f32 v%d, v%d, v%d" % (T + r, T + r, G + r))
            round_pair(epi, T + 8, T, T + 1, T, T + 1); round_pair(epi, T + 9, T + 2, T + 3, T + 2, T + 3)
            e("v_lshlrev_b32 v%d, 16, v%d" % (T + 4, Rr)); e("v_and_b32 v%d, 0xffff0000, v%d" % (T + 5, Rr))
            e("v_lshlrev_b32 v%d, 16, v%d" % (T + 6, Rr + 1)); e("v_and_b32 v%d, 0xffff0000, v%d" % (T + 7, Rr + 1))
            for r in range(4): e("v_add_f32 v%d, v%d, v%d" % (T + r, T + r, T + 4 + r))
            if down and opts.get("pmul"):
                for r in range(4): e("v_mul_f32 v%d, %s, v%d" % (T + r, fhex(float(opts["pmul"])), T + r))
            e("v_cvt_pk_bf16_f32 v%d, v%d, v%d" % (Rr, T, T + 1)); e("v_cvt_pk_bf16_f32 v%d, v%d, v%d" % (Rr + 1, T + 2, T + 3))
            e("buffer_store_dwordx2 v[%d:%d], v14, s[28:31], %s offen offset:%d %s" % (Rr, Rr + 1, "s48" if tb else "0", nb * 32, opts.get("stfl", "")))
    prof(epi, opts, 4)
    prof_end(epi, opts, kidx, 4, 5)
    stamp_end(epi, opts, kidx, 4)
    epi.label("L_%s_done" % L); e("s_endpgm")
    p, b, ep = merge_loop(pro, bodies, epi)
    allv, _ = check_hazards(p + b + ep, autofix=True, name=name)
    _, nb_ = check_hazards([l for l in b if not l.endswith(":")] * 2, autofix=False, name=name + " backedge")
    assert nb_ == 0
    return header(name) + fmt(allv) + desc(name, 512, 100, 256)

def k_gu(name, opts):
    L = name; NIT = 4
    acc = lambda tb, mx, fb: ((tb * 2 + mx) * 7 + fb) * 4
    VT = 240; VL = 224; VD = 225; VR = 232
    ar = lambda slot, i, tb: slot * 32 + (i * 4 + tb) * 4
    NWF = 8
    wf = lambda eidx: 128 + (eidx % NWF) * 4
    SLOT = 28672
    pro = Seq(); e = pro.e
    stamp_begin(pro, opts)
    e("s_cmp_ge_u32 s2, 256"); e("s_cbranch_scc1 L_%s_done" % L)
    e("s_load_dwordx2 s[4:5], s[0:1], %d" % KA_WS)
    e("s_load_dwordx2 s[6:7], s[0:1], %d" % KA_WG)
    e("s_load_dwordx2 s[8:9], s[0:1], %d" % KA_WU)
    e("v_mov_b32 v%d, v0" % VT)
    if opts.get("prof"): e("v_mov_b32 v255, v0")
    prof(pro, opts, 0)
    wave_id(pro, 36, 1)
    e("s_and_b32 s42, s2, 1"); e("s_lshl_b32 s42, s42, 2"); e("s_bfe_u32 s68, s2, 0x20003"); e("s_add_u32 s37, s42, s68")
    e("s_bfe_u32 s42, s2, 0x20001"); e("s_lshl_b32 s42, s42, 3"); e("s_lshr_b32 s61, s2, 5"); e("s_add_u32 s38, s42, s61")
    e("s_lshl_b32 s42, s68, 1"); e("s_add_u32 s62, s61, s42")
    if not opts.get("rot", 1): e("s_mov_b32 s62, 0")
    e("s_mov_b32 s63, 0")
    e("v_and_b32 v10, 63, v%d" % VT)
    e("v_lshlrev_b32 v%d, 4, v10" % VL)
    e("s_and_b32 s42, s36, 1"); e("s_mul_i32 s42, s42, %d" % (32 * 7168))
    for j in range(7):
        e("v_add_u32 v11, %d, v10" % (64 * j))
        e("v_mul_u32_u24 v12, 4682, v11"); e("v_lshrrev_b32 v12, 16, v12")
        e("v_mul_u32_u24 v13, 14, v12"); e("v_sub_u32 v13, v11, v13")
        e("v_mul_u32_u24 v12, 7168, v12"); e("v_lshl_add_u32 v12, v13, 4, v12")
        e("v_add_u32 v12, s42, v12")
        imm = (j % 4) * 1024
        e("v_subrev_u32 v%d, %d, v12" % (VD + j, imm))
    e("v_lshrrev_b32 v11, 2, v10"); e("v_mul_u32_u24 v11, 224, v11"); e("v_and_b32 v12, 3, v10"); e("v_lshl_add_u32 v%d, v12, 3, v11" % VR)
    e("v_add_u32 v%d, %d, v%d" % (VR + 1, 2 * SLOT, VR))
    e("s_waitcnt lgkmcnt(0)")
    e("s_lshl_b32 s42, s37, 4"); e("s_lshl_b32 s43, s36, 2"); e("s_add_u32 s42, s42, s43"); e("s_lshl_b32 s49, s42, 15")
    e("s_mul_i32 s50, s42, %d" % (112 * 1024))
    e("s_add_u32 s42, s49, 0x%x" % WS_H2)
    for tb in range(4):
        srd(pro, 12 + 4 * tb, 4, "s42", 32768)
        if tb < 3: e("s_add_u32 s42, s42, 32768")
    e("s_cmp_ge_u32 s36, 2"); e("s_cselect_b32 s6, s8, s6"); e("s_cselect_b32 s7, s9, s7")
    e("s_mul_i32 s42, s38, 224")
    srd(pro, 28, 6, "s42", 0); e("s_sub_u32 s30, %d, s42" % (1024 * 7168))
    e("s_add_u32 s42, s50, 0x%x" % WS_ACT)
    srd(pro, 32, 4, "s42", 4 * 112 * 1024)
    for sl in range(4):
        e("s_mul_i32 s%d, s36, 7168" % (44 + sl)); e("s_add_u32 s%d, s%d, %d" % (44 + sl, 44 + sl, sl * SLOT))

    def act_load1(q, t, i, tb):
        r = ar(t & 3, i, tb)
        q.vm("buffer_load_dwordx4 a[%d:%d], v%d, s[%d:%d], s39 offen offset:%d" % (r, r + 3, VL, 12 + 4 * tb, 15 + 4 * tb, i * 1024), ("act", t, i, tb))
    def w_dma1(q, t, j):
        if j == 0: q.e("s_mov_b32 m0, s%d" % (44 + (t & 3))); q.e("s_nop 0")
        if j == 4: q.e("s_add_u32 m0, s%d, 4096" % (44 + (t & 3))); q.e("s_nop 0")
        q.vm("buffer_load_dwordx4 v%d, s[28:31], s40 offen offset:%d lds" % (VD + j, (j % 4) * 1024), ("W", t, j))
    def adv(q):
        rot_next(q, 63, 62, opts.get("guw", 1), 64)
        q.e("s_lshl_b32 s39, s64, 11"); q.e("s_mul_i32 s40, s64, %d" % (64 * 7168))
    def frag(E):
        t = E // 28; r = E % 28; return t, r // 14, (r % 14) // 2, r % 2
    def w_read1(q, E, tt):
        t, i, fb, mx = frag(E); sl = t & 3
        r = wf(E) + 2 * tt
        q.lds("ds_read_b64_tr_b16 a[%d:%d], v%d offset:%d" % (r, r + 1, VR + (sl >> 1), (sl & 1) * SLOT + mx * 14336 + (32 * i + 16 * tt) * 224 + fb * 32), ("wf", E, tt))
    def vm_ops(t):
        ops = {}
        order = []
        for k in range(8): order.append(("act", k))
        seq = [("act", 0), ("W", 0), ("act", 1), ("W", 1), ("act", 2), ("W", 2), ("act", 3), ("W", 3), ("act", 4), ("W", 4), ("act", 5), ("W", 5), ("act", 6), ("W", 6), ("act", 7)]
        pos = [0, 2, 3, 5, 6, 8, 9, 11, 12, 14, 15, 17, 18, 20, 21]
        return dict(zip(pos, seq))
    def issue(q, t, op):
        if op[0] == "act": act_load1(q, t, op[1] // 4, op[1] % 4)
        else: w_dma1(q, t, op[1])
    RA = 4
    def reads_at(e_):
        if e_ in (22, 23): return []
        if e_ in (20, 21): return [e_ + RA, e_ + RA + 2]
        return [e_ + RA]
    GD = opts.get("gud", 2)
    for t in range(GD):
        adv(pro)
        vo = vm_ops(t)
        for p_ in sorted(vo): issue(pro, t, vo[p_])
    adv(pro)
    for i in range(224): e("v_mov_b32 v%d, 0" % i)
    prof(pro, opts, 1)
    pro.wait_vm(("W", 0, 6)); e("s_barrier")
    prof(pro, opts, 2)
    for E in range(RA): w_read1(pro, E, 0); w_read1(pro, E, 1)
    e("s_mov_b32 s41, %d" % NIT)
    pro.label("L_%s_loop" % L)
    def body(it):
        q = Seq()
        for ts in range(4):
            t = it * 4 + ts; vo = vm_ops(t)
            tq = Seq(); adv(tq); sal = [x.text for x in tq.items]
            for e_ in range(28):
                E = t * 28 + e_; _, i, fb, mx = frag(E)
                if e_ == 28 - RA:
                    q.wait_vm(("W", t + 1, 6)); q.e("s_barrier")
                q.wait_lgkm(("wf", E, 1))
                if e_ % 14 == 0: q.wait_vm(("act", t, i, 3))
                for tb in range(4):
                    A = acc(tb, mx, fb)
                    q.e("v_mfma_f32_16x16x32_bf16 v[%d:%d], a[%d:%d], a[%d:%d], v[%d:%d]" % (A, A + 3, wf(E), wf(E) + 3, ar(t & 3, i, tb), ar(t & 3, i, tb) + 3, A, A + 3))
                    if tb < 2: w_read1(q, E + RA, tb)
                    if tb == 2 and e_ in vo: issue(q, t + GD, vo[e_])
                    if tb == 3 and e_ >= 21 and sal: q.e(sal.pop(0))
            assert not sal
        q.e("s_sub_u32 s41, s41, 1"); q.e("s_cmp_lg_u32 s41, 0"); q.e("s_cbranch_scc1 L_%s_loop" % L)
        return q
    bodies = [body(i) for i in range(3)]
    epi = Seq(); e = epi.e
    e("s_waitcnt lgkmcnt(0)"); e("s_nop 7")
    prof(epi, opts, 3)
    e("s_mul_i32 s42, s38, 7")
    for fb in range(7):
        e("s_add_u32 s43, s42, %d" % fb); e("s_lshr_b32 s%d, s43, 1" % (52 + fb)); e("s_lshl_b32 s%d, s%d, 10" % (52 + fb, 52 + fb))
        e("s_and_b32 s43, s43, 1"); e("s_lshl_b32 s43, s43, 3"); e("s_add_u32 s%d, s%d, s43" % (52 + fb, 52 + fb))
    for tb in range(4): e("v_add_u32 v%d, %d, v%d" % (VD + tb, tb * 114688, VL))
    T = 234
    e("s_mov_b32 s60, 0xbfb8aa3b")
    n = 0
    for tb in range(4):
        for fb in range(7):
            G = acc(tb, 0, fb); U = acc(tb, 1, fb); t0 = T + (n % 2) * 8; n += 1
            if opts.get("gu_emul", 0):
                round_pair(epi, t0 + 6, G, G + 1, G, G + 1); round_pair(epi, t0 + 7, G + 2, G + 3, G + 2, G + 3)
                round_pair(epi, t0 + 6, U, U + 1, U, U + 1); round_pair(epi, t0 + 7, U + 2, U + 3, U + 2, U + 3)
            for r in range(4): e("v_mul_f32 v%d, s60, v%d" % (t0 + r, G + r))
            for r in range(4): e("v_exp_f32 v%d, v%d" % (t0 + r, t0 + r))
            for r in range(4): e("v_add_f32 v%d, 1.0, v%d" % (t0 + r, t0 + r))
            for r in range(4): e("v_rcp_f32 v%d, v%d" % (t0 + r, t0 + r))
            if opts.get("gu_emul", 0):
                for r in range(4): e("v_mul_f32 v%d, v%d, v%d" % (t0 + r, t0 + r, G + r))
                round_pair(epi, t0 + 6, t0, t0 + 1, t0, t0 + 1); round_pair(epi, t0 + 7, t0 + 2, t0 + 3, t0 + 2, t0 + 3)
                for r in range(4): e("v_mul_f32 v%d, v%d, v%d" % (t0 + r, t0 + r, U + r))
            else:
                for r in range(4): e("v_mul_f32 v%d, v%d, v%d" % (G + r, G + r, U + r))
                for r in range(4): e("v_mul_f32 v%d, v%d, v%d" % (t0 + r, t0 + r, G + r))
            e("v_cvt_pk_bf16_f32 v%d, v%d, v%d" % (t0 + 4, t0, t0 + 1)); e("v_cvt_pk_bf16_f32 v%d, v%d, v%d" % (t0 + 5, t0 + 2, t0 + 3))
            e("buffer_store_dwordx2 v[%d:%d], v%d, s[32:35], s%d offen %s" % (t0 + 4, t0 + 5, VD + tb, 52 + fb, opts.get("stfl", "")))
    prof(epi, opts, 4)
    prof_end(epi, opts, 5, 4, 5)
    stamp_end(epi, opts, 5, 4)
    epi.label("L_%s_done" % L); e("s_endpgm")
    p, b, ep = merge_loop(pro, bodies, epi)
    allv, _ = check_hazards(p + b + ep, autofix=True, name=name)
    _, nb_ = check_hazards([l for l in b if not l.endswith(":")] * 2, autofix=False, name=name + " backedge")
    assert nb_ == 0
    return header(name) + fmt(allv) + desc(name, 512, 100, 256)
```

```python
from common import *

def k_mod(name="mod_kernel", opts={}):
    q = Seq(); e = q.e
    stamp_begin(q, opts)
    e("s_cmp_ge_u32 s2, 192"); e("s_cbranch_scc1 L_mod_done")
    e("s_load_dwordx2 s[4:5], s[0:1], %d" % KA_C)
    e("s_load_dwordx2 s[6:7], s[0:1], %d" % KA_WMOD)
    e("s_load_dwordx2 s[8:9], s[0:1], %d" % KA_WS)
    e("v_and_b32 v1, 0x3c0, v0"); e("v_bfe_u32 v2, v0, 2, 4"); e("v_add_u32 v1, v1, v2")
    e("v_and_b32 v2, 3, v0")
    e("v_lshlrev_b32 v3, 1, v1")
    e("v_mul_u32_u24 v4, 0x3000, v1")
    e("v_lshl_add_u32 v4, v2, 4, v4")
    e("s_lshl_b32 s3, s2, 6"); e("v_add_u32 v4, s3, v4")
    e("s_waitcnt lgkmcnt(0)")
    srd(q, 12, 4, 0, 2048); srd(q, 16, 6, 0, 1024 * 6144 * 2); srd(q, 20, 8, WS_MOD, 6144 * 4)
    for t in range(4): e("buffer_load_ushort v%d, v3, s[12:15], 0 offen offset:%d" % (8 + t, 32 * t))
    for t in range(4):
        e("s_mov_b32 s%d, %d" % (24 + t, t * 16 * 12288))
    for t in range(4): e("buffer_load_dwordx4 v[%d:%d], v4, s[16:19], s%d offen" % (16 + 4 * t, 19 + 4 * t, 24 + t))
    e("s_waitcnt vmcnt(4)")
    for t in range(4):
        e("v_lshlrev_b32 v%d, 16, v%d" % (8 + t, 8 + t))
    for t in range(4): e("v_mul_f32 v%d, 0xbfb8aa3b, v%d" % (12 + t, 8 + t))
    for t in range(4): e("v_exp_f32 v%d, v%d" % (12 + t, 12 + t))
    for t in range(4): e("v_add_f32 v%d, 1.0, v%d" % (12 + t, 12 + t))
    for t in range(4): e("v_rcp_f32 v%d, v%d" % (12 + t, 12 + t))
    for t in range(4): e("v_mul_f32 v%d, v%d, v%d" % (8 + t, 8 + t, 12 + t))
    for t in range(4): e("v_cvt_pk_bf16_f32 v%d, v%d, v%d" % (8 + t, 8 + t, 8 + t))
    for t in range(4): e("v_lshlrev_b32 v%d, 16, v%d" % (8 + t, 8 + t))
    for t in range(4):
        e("s_waitcnt vmcnt(%d)" % (3 - t))
        for d in range(4):
            e("v_lshlrev_b32 v40, 16, v%d" % (16 + 4 * t + d)); e("v_and_b32 v41, 0xffff0000, v%d" % (16 + 4 * t + d))
            if t == 0:
                e("v_mul_f32 v%d, v%d, v40" % (32 + 2 * d, 8 + t)); e("v_mul_f32 v%d, v%d, v41" % (33 + 2 * d, 8 + t))
            else:
                e("v_fmac_f32 v%d, v%d, v40" % (32 + 2 * d, 8 + t)); e("v_fmac_f32 v%d, v%d, v41" % (33 + 2 * d, 8 + t))
    for rot in (4, 8):
        for i in range(8): e("v_add_f32_dpp v%d, v%d, v%d row_ror:%d row_mask:0xf bank_mask:0xf" % (32 + i, 32 + i, 32 + i, rot))
    e("v_lshrrev_b32 v5, 4, v0"); e("v_lshlrev_b32 v5, 7, v5"); e("v_lshl_add_u32 v5, v2, 5, v5")
    e("v_and_b32 v6, 12, v0"); e("v_cmp_eq_u32 vcc, 0, v6")
    e("s_and_saveexec_b64 s[28:29], vcc")
    e("ds_write_b128 v5, v[32:35]"); e("ds_write_b128 v5, v[36:39] offset:16")
    e("s_mov_b64 exec, s[28:29]")
    e("s_waitcnt lgkmcnt(0)"); e("s_barrier")
    e("v_readfirstlane_b32 s30, v0"); e("s_cmp_ge_u32 s30, 64"); e("s_cbranch_scc1 L_mod_done")
    e("v_and_b32 v6, 31, v0"); e("v_lshrrev_b32 v7, 5, v0"); e("v_lshlrev_b32 v5, 12, v7"); e("v_lshl_add_u32 v5, v6, 2, v5")
    for p in range(32): e("ds_read_b32 v%d, v5 offset:%d" % (8 + p, p * 128))
    for half in range(2):
        e("s_waitcnt lgkmcnt(%d)" % (15 if half == 0 else 0))
        if half == 0:
            for p in range(1, 16): e("v_add_f32 v8, v8, v%d" % (8 + p))
        else:
            for p in range(16, 32): e("v_add_f32 v8, v8, v%d" % (8 + p))
    e("v_mov_b32 v9, v8")
    e("v_permlane32_swap_b32 v8, v9")
    e("v_add_f32 v8, v8, v9")
    e("v_cvt_pk_bf16_f32 v8, v8, v8"); e("v_lshlrev_b32 v8, 16, v8")
    e("s_lshl_b32 s3, s2, 7"); e("v_lshl_add_u32 v5, v6, 2, s3")
    e("v_cmp_gt_u32 vcc, 32, v0"); e("s_and_saveexec_b64 s[28:29], vcc")
    e("buffer_store_dword v8, v5, s[20:23], 0 offen")
    stamp_end(q, opts, 0, 8)
    e("s_waitcnt vmcnt(0)")
    q.label("L_mod_done"); e("s_endpgm")
    return finish(name, render(q), 48, 100, 48)

def k_ln(name, second, opts={}):
    q = Seq(); e = q.e; L = "L_%s_done" % name
    stamp_begin(q, opts)
    e("s_cmp_ge_u32 s2, 256"); e("s_cbranch_scc1 " + L)
    e("s_load_dwordx2 s[4:5], s[0:1], %d" % KA_X)
    e("s_load_dwordx2 s[8:9], s[0:1], %d" % KA_WS)
    e("v_and_b32 v1, 7, v0"); e("v_bfe_u32 v2, v0, 3, 3"); e("v_lshrrev_b32 v3, 6, v0"); e("v_lshl_add_u32 v2, v3, 4, v2")
    e("s_lshl_b32 s3, s2, 3"); e("v_add_u32 v4, s3, v1")
    e("v_lshlrev_b32 v5, 11, v4"); e("v_lshl_add_u32 v5, v2, 4, v5")
    e("v_lshlrev_b32 v6, 5, v2")
    e("s_waitcnt lgkmcnt(0)")
    if second: srd(q, 12, 8, WS_X1, SEQ * DM * 2)
    else: srd(q, 12, 4, 0, SEQ * DM * 2)
    srd(q, 16, 8, WS_MOD, 6144 * 4)
    srd(q, 20, 8, WS_H2 if second else WS_H, SEQ * DM * 2)
    sh = (3 if second else 0) * 4096; sc = (4 if second else 1) * 4096
    e("s_mov_b32 s24, %d" % sh); e("s_mov_b32 s25, %d" % sc)
    for i in range(2): e("buffer_load_dwordx4 v[%d:%d], v5, s[12:15], 0 offen offset:%d" % (8 + 4 * i, 11 + 4 * i, 128 * i))
    for i in range(2):
        for hh in range(2):
            e("buffer_load_dwordx4 v[%d:%d], v6, s[16:19], s25 offen offset:%d" % (48 + 8 * i + 4 * hh, 51 + 8 * i + 4 * hh, 256 * i + 16 * hh))
    for i in range(2):
        for hh in range(2):
            e("buffer_load_dwordx4 v[%d:%d], v6, s[16:19], s24 offen offset:%d" % (64 + 8 * i + 4 * hh, 67 + 8 * i + 4 * hh, 256 * i + 16 * hh))
    e("s_waitcnt vmcnt(8)")
    for d in range(8):
        e("v_lshlrev_b32 v%d, 16, v%d" % (16 + 2 * d, 8 + d)); e("v_and_b32 v%d, 0xffff0000, v%d" % (17 + 2 * d, 8 + d))
    def reduce(src, ldsoff):
        e("v_add_f32_dpp v%d, v%d, v%d row_ror:8 row_mask:0xf bank_mask:0xf" % (src, src, src))
        e("v_mov_b32 v33, v%d" % src); e("v_permlane16_swap_b32 v%d, v33" % src); e("v_add_f32 v%d, v%d, v33" % (src, src))
        e("v_mov_b32 v33, v%d" % src); e("v_permlane32_swap_b32 v%d, v33" % src); e("v_add_f32 v%d, v%d, v33" % (src, src))
        e("v_and_b32 v34, 63, v0"); e("v_cmp_gt_u32 vcc, 8, v34")
        e("v_lshlrev_b32 v35, 5, v1"); e("v_lshl_add_u32 v35, v3, 2, v35")
        e("s_and_saveexec_b64 s[28:29], vcc")
        e("ds_write_b32 v35, v%d offset:%d" % (src, ldsoff))
        e("s_mov_b64 exec, s[28:29]")
        e("s_waitcnt lgkmcnt(0)"); e("s_barrier")
        e("v_lshlrev_b32 v35, 5, v1")
        e("ds_read_b128 v[36:39], v35 offset:%d" % ldsoff); e("ds_read_b128 v[40:43], v35 offset:%d" % (ldsoff + 16))
        e("s_waitcnt lgkmcnt(0)")
        e("v_add_f32 v36, v36, v37"); e("v_add_f32 v38, v38, v39"); e("v_add_f32 v40, v40, v41"); e("v_add_f32 v42, v42, v43")
        e("v_add_f32 v36, v36, v38"); e("v_add_f32 v40, v40, v42"); e("v_add_f32 v%d, v36, v40" % src)
    e("v_add_f32 v32, v16, v17")
    for d in range(2, 16): e("v_add_f32 v32, v32, v%d" % (16 + d))
    reduce(32, 0)
    e("v_mul_f32 v32, 0x3a800000, v32")
    e("v_sub_f32 v44, v16, v32"); e("v_mul_f32 v45, v44, v44")
    for d in range(1, 16):
        e("v_sub_f32 v44, v%d, v32" % (16 + d)); e("v_fmac_f32 v45, v44, v44")
    reduce(45, 256)
    e("v_mul_f32 v45, 0x3a800000, v45")
    round_pair(q, 44, 32, 45, 32, 45)
    e("v_add_f32 v45, 0x3727c5ac, v45")
    round_pair(q, 44, 45, 45, 45)
    e("v_sqrt_f32 v45, v45")
    round_pair(q, 44, 45, 45, 45)
    e("v_rcp_f32 v45, v45")
    e("s_waitcnt vmcnt(0)")
    for d in range(16): e("v_add_f32 v%d, 1.0, v%d" % (48 + d, 48 + d))
    for d in range(0, 16, 2): round_pair(q, 44, 48 + d, 49 + d, 48 + d, 49 + d)
    for d in range(16): e("v_sub_f32 v%d, v%d, v32" % (16 + d, 16 + d))
    for d in range(0, 16, 2): round_pair(q, 44 if d % 4 == 0 else 46, 16 + d, 17 + d, 16 + d, 17 + d)
    for d in range(16): e("v_mul_f32 v%d, v%d, v45" % (16 + d, 16 + d))
    for d in range(0, 16, 2): round_pair(q, 44 if d % 4 == 0 else 46, 16 + d, 17 + d, 16 + d, 17 + d)
    for d in range(16): e("v_mul_f32 v%d, v%d, v%d" % (16 + d, 16 + d, 48 + d))
    for d in range(0, 16, 2): round_pair(q, 44 if d % 4 == 0 else 46, 16 + d, 17 + d, 16 + d, 17 + d)
    for d in range(16): e("v_add_f32 v%d, v%d, v%d" % (16 + d, 16 + d, 64 + d))
    for d in range(0, 16, 2): e("v_cvt_pk_bf16_f32 v%d, v%d, v%d" % (8 + d // 2, 16 + d, 17 + d))
    if not second:
        e("v_lshrrev_b32 v5, 5, v4"); e("v_lshlrev_b32 v5, 16, v5"); e("v_lshl_add_u32 v5, v2, 9, v5")
        e("v_and_b32 v6, 31, v4"); e("v_lshl_add_u32 v5, v6, 4, v5")
        e("s_movk_i32 s26, 0x1000")
        e("buffer_store_dwordx4 v[8:11], v5, s[20:23], 0 offen %s" % opts.get("hstfl", "sc1"))
        e("buffer_store_dwordx4 v[12:15], v5, s[20:23], s26 offen %s" % opts.get("hstfl", "sc1"))
    else:
        e("v_lshrrev_b32 v5, 4, v4"); e("v_lshlrev_b32 v5, 15, v5")
        e("v_lshrrev_b32 v6, 2, v2"); e("v_lshl_add_u32 v5, v6, 10, v5")
        e("v_and_b32 v6, 15, v4"); e("v_lshl_add_u32 v5, v6, 4, v5")
        e("v_and_b32 v6, 1, v2"); e("v_lshl_add_u32 v5, v6, 9, v5")
        e("v_bfe_u32 v6, v2, 1, 1"); e("v_lshl_add_u32 v5, v6, 3, v5")
        for i in range(2):
            e("buffer_store_dwordx2 v[%d:%d], v5, s[20:23], 0 offen offset:%d %s" % (8 + 4 * i, 9 + 4 * i, 2048 * i, opts.get("stfl", "")))
            e("buffer_store_dwordx2 v[%d:%d], v5, s[20:23], 0 offen offset:%d %s" % (10 + 4 * i, 11 + 4 * i, 2048 * i + 256, opts.get("stfl", "")))
    stamp_end(q, opts, 4 if second else 1, 8)
    q.label(L); e("s_endpgm")
    return finish(name, render(q), 80, 100, 80)

WS_PART = 0x20000
WS_PART2 = 0x30000

def k_gemv(name, opts={}):
    q = Seq(); e = q.e; L = "L_%s" % name
    stamp_begin(q, opts)
    e("s_cmp_ge_u32 s2, 256"); e("s_cbranch_scc1 %s_done" % L)
    prof(q, opts, 0)
    if opts.get("prof"): e("v_mov_b32 v127, v0")
    e("s_load_dwordx2 s[4:5], s[0:1], %d" % KA_C)
    e("s_load_dwordx2 s[6:7], s[0:1], %d" % KA_WMOD)
    e("s_load_dwordx2 s[8:9], s[0:1], %d" % KA_WS)
    e("v_lshrrev_b32 v3, 6, v0"); e("v_readfirstlane_b32 s36, v3")
    e("s_cmp_lt_u32 s2, 128"); e("s_cselect_b32 s37, 1, 0")
    e("s_lshr_b32 s42, s2, 5"); e("s_lshl_b32 s42, s42, 8"); e("s_lshl_b32 s43, s36, 4"); e("s_add_u32 s42, s42, s43")
    e("s_bfe_u32 s43, s2, 0x10006"); e("s_lshl_b32 s43, s43, 9"); e("s_lshl_b32 s38, s36, 5"); e("s_add_u32 s43, s43, s38")
    e("s_cmp_eq_u32 s37, 1"); e("s_cselect_b32 s38, s42, s43")
    e("s_and_b32 s42, s2, 31"); e("s_lshl_b32 s42, s42, 6"); e("s_and_b32 s43, s2, 63"); e("s_lshl_b32 s43, s43, 6"); e("s_add_u32 s43, s43, 2048")
    e("s_cmp_eq_u32 s37, 1"); e("s_cselect_b32 s39, s42, s43")
    e("v_bfe_u32 v2, v0, 3, 3"); e("v_add_u32 v1, s38, v2")
    e("v_and_b32 v2, 7, v0")
    e("v_lshlrev_b32 v3, 1, v1")
    e("v_mul_u32_u24 v4, 0x3000, v1"); e("v_lshl_add_u32 v4, v2, 4, v4"); e("s_lshl_b32 s42, s39, 1"); e("v_add_u32 v4, s42, v4")
    e("s_mov_b32 s24, 0"); e("s_mov_b32 s25, %d" % (8 * 12288))
    e("s_cmp_eq_u32 s37, 1"); e("s_cselect_b32 s42, 0x4000000, 0")
    e("s_add_u32 s26, s42, %d" % (16 * 12288)); e("s_add_u32 s27, s42, %d" % (24 * 12288))
    e("s_add_u32 s28, s42, 32"); e("s_add_u32 s29, s42, 48")
    e("s_waitcnt lgkmcnt(0)")
    srd(q, 12, 4, 0, 2048); srd(q, 16, 6, 0, 1024 * 6144 * 2); srd(q, 20, 8, 0, 0x40000)
    prof(q, opts, 1)
    for t in range(4): e("buffer_load_dwordx4 v[%d:%d], v4, s[16:19], s%d offen" % (16 + 4 * t, 19 + 4 * t, 24 + t))
    e("buffer_load_ushort v8, v3, s[12:15], 0 offen"); e("buffer_load_ushort v9, v3, s[12:15], 0 offen offset:16")
    e("buffer_load_ushort v10, v3, s[12:15], s28 offen"); e("buffer_load_ushort v11, v3, s[12:15], s29 offen")
    prof(q, opts, 2)
    if opts.get("prof"): e("s_waitcnt vmcnt(7)"); prof(q, opts, 3)
    e("s_waitcnt vmcnt(0)")
    prof(q, opts, 4)
    for t in range(4): e("v_lshlrev_b32 v%d, 16, v%d" % (8 + t, 8 + t))
    for t in range(4): e("v_mul_f32 v%d, 0xbfb8aa3b, v%d" % (12 + t, 8 + t))
    for t in range(4): e("v_exp_f32 v%d, v%d" % (12 + t, 12 + t))
    for t in range(4): e("v_add_f32 v%d, 1.0, v%d" % (12 + t, 12 + t))
    for t in range(4): e("v_rcp_f32 v%d, v%d" % (12 + t, 12 + t))
    for t in range(4): e("v_mul_f32 v%d, v%d, v%d" % (8 + t, 8 + t, 12 + t))
    for t in range(4): e("v_cvt_pk_bf16_f32 v%d, v%d, v%d" % (8 + t, 8 + t, 8 + t))
    for t in range(4): e("v_lshlrev_b32 v%d, 16, v%d" % (8 + t, 8 + t))
    for t in range(4):
        if t == 2: e("s_cmp_eq_u32 s37, 1"); e("s_cbranch_scc1 %s_fdone" % L)
        for d in range(4):
            e("v_lshlrev_b32 v40, 16, v%d" % (16 + 4 * t + d)); e("v_and_b32 v41, 0xffff0000, v%d" % (16 + 4 * t + d))
            if t == 0:
                e("v_mul_f32 v%d, v%d, v40" % (32 + 2 * d, 8 + t)); e("v_mul_f32 v%d, v%d, v41" % (33 + 2 * d, 8 + t))
            else:
                e("v_fmac_f32 v%d, v%d, v40" % (32 + 2 * d, 8 + t)); e("v_fmac_f32 v%d, v%d, v41" % (33 + 2 * d, 8 + t))
    q.label("%s_fdone" % L)
    for i in range(8): e("v_add_f32_dpp v%d, v%d, v%d row_ror:8 row_mask:0xf bank_mask:0xf" % (32 + i, 32 + i, 32 + i))
    for i in range(8): e("v_mov_b32 v%d, v%d" % (16 + i, 32 + i))
    for i in range(8): e("v_permlane16_swap_b32 v%d, v%d" % (32 + i, 16 + i))
    for i in range(8): e("v_add_f32 v%d, v%d, v%d" % (32 + i, 32 + i, 16 + i))
    for i in range(8): e("v_mov_b32 v%d, v%d" % (16 + i, 32 + i))
    for i in range(8): e("v_permlane32_swap_b32 v%d, v%d" % (32 + i, 16 + i))
    for i in range(8): e("v_add_f32 v%d, v%d, v%d" % (32 + i, 32 + i, 16 + i))
    e("s_lshl_b32 s3, s36, 8"); e("v_lshl_add_u32 v5, v2, 5, s3")
    e("v_and_b32 v6, 63, v0"); e("v_cmp_gt_u32 vcc, 8, v6")
    e("s_and_saveexec_b64 s[30:31], vcc")
    e("ds_write_b128 v5, v[32:35]"); e("ds_write_b128 v5, v[36:39] offset:16")
    e("s_mov_b64 exec, s[30:31]")
    e("s_waitcnt lgkmcnt(0)"); e("s_barrier")
    e("s_cmp_lg_u32 s36, 0"); e("s_cbranch_scc1 %s_done" % L)
    e("v_lshlrev_b32 v5, 2, v0")
    for p in range(16): e("ds_read_b32 v%d, v5 offset:%d" % (8 + p, p * 256))
    e("s_waitcnt lgkmcnt(0)")
    for p in range(0, 16, 2): e("v_add_f32 v%d, v%d, v%d" % (8 + p, 8 + p, 9 + p))
    for p in range(0, 16, 4): e("v_add_f32 v%d, v%d, v%d" % (8 + p, 8 + p, 10 + p))
    e("v_add_f32 v8, v8, v12"); e("v_add_f32 v16, v16, v20"); e("v_add_f32 v8, v8, v16")
    e("s_lshr_b32 s3, s2, 5"); e("s_lshl_b32 s3, s3, 13"); e("s_lshl_b32 s42, s39, 2"); e("s_add_u32 s3, s3, s42"); e("s_add_u32 s3, s3, 0x%x" % WS_PART)
    e("s_bfe_u32 s43, s2, 0x10006"); e("s_lshl_b32 s43, s43, 14"); e("s_add_u32 s43, s43, s42"); e("s_add_u32 s43, s43, 0x%x" % (WS_PART2 - 2048 * 4))
    e("s_cmp_eq_u32 s37, 1"); e("s_cselect_b32 s3, s3, s43")
    e("v_add_u32 v5, s3, v5")
    e("buffer_store_dword v8, v5, s[20:23], 0 offen")
    prof(q, opts, 5)
    prof_end(q, opts, 0, 8, 6, 127, True)
    stamp_end(q, opts, 0, 8)
    q.label("%s_done" % L); e("s_endpgm")
    return finish(name, render(q), 128, 100, 128)

def k_ln1(name, opts={}):
    q = Seq(); e = q.e; L = "L_%s" % name
    stamp_begin(q, opts)
    e("s_cmp_ge_u32 s2, 256"); e("s_cbranch_scc1 %s_done" % L)
    e("s_load_dwordx2 s[8:9], s[0:1], %d" % KA_WS)
    e("s_load_dwordx2 s[10:11], s[0:1], %d" % KA_X)
    e("v_lshrrev_b32 v3, 6, v0"); e("v_readfirstlane_b32 s36, v3")
    e("v_and_b32 v44, 7, v0"); e("v_lshrrev_b32 v45, 3, v0")
    e("s_lshl_b32 s3, s2, 3"); e("v_add_u32 v46, s3, v44")
    e("v_lshlrev_b32 v47, 11, v46"); e("v_lshl_add_u32 v47, v45, 4, v47")
    e("v_lshlrev_b32 v5, 3, v0"); e("v_add_u32 v6, 0x%x, v5" % WS_PART)
    e("s_mov_b32 s24, 8192"); e("s_mov_b32 s25, 16384"); e("s_mov_b32 s26, 24576")
    e("s_waitcnt lgkmcnt(0)")
    srd(q, 12, 10, 0, SEQ * DM * 2); srd(q, 20, 8, 0, 0x40000); srd(q, 32, 8, WS_H, SEQ * DM * 2)
    e("buffer_load_dwordx4 v[48:51], v47, s[12:15], 0 offen")
    for kq in range(4): e("buffer_load_dwordx2 v[%d:%d], v6, s[20:23], %s offen" % (60 + 2 * kq, 61 + 2 * kq, "0" if kq == 0 else "s%d" % (23 + kq)))
    e("s_waitcnt vmcnt(0)")
    for i in range(2):
        e("v_add_f32 v%d, v%d, v%d" % (60 + i, 60 + i, 62 + i)); e("v_add_f32 v%d, v%d, v%d" % (64 + i, 64 + i, 66 + i)); e("v_add_f32 v%d, v%d, v%d" % (60 + i, 60 + i, 64 + i))
    round_pair(q, 62, 60, 61, 60, 61)
    e("v_add_f32 v62, 1.0, v60"); e("v_add_f32 v63, 1.0, v61")
    round_pair(q, 64, 62, 63, 62, 63)
    e("v_cmp_le_u32 vcc, 512, v0")
    e("v_cndmask_b32 v60, v60, v62, vcc"); e("v_cndmask_b32 v61, v61, v63, vcc")
    e("ds_write_b64 v5, v[60:61] offset:8192")
    for d in range(4):
        e("v_lshlrev_b32 v%d, 16, v%d" % (52 + 2 * d, 48 + d)); e("v_and_b32 v%d, 0xffff0000, v%d" % (53 + 2 * d, 48 + d))
    def reduce(src, ldsoff):
        e("v_add_f32_dpp v%d, v%d, v%d row_ror:8 row_mask:0xf bank_mask:0xf" % (src, src, src))
        e("v_mov_b32 v33, v%d" % src); e("v_permlane16_swap_b32 v%d, v33" % src); e("v_add_f32 v%d, v%d, v33" % (src, src))
        e("v_mov_b32 v33, v%d" % src); e("v_permlane32_swap_b32 v%d, v33" % src); e("v_add_f32 v%d, v%d, v33" % (src, src))
        e("v_and_b32 v34, 63, v0"); e("v_cmp_gt_u32 vcc, 8, v34")
        e("v_lshlrev_b32 v35, 6, v44"); e("s_lshl_b32 s3, s36, 2"); e("v_add_u32 v35, s3, v35")
        e("s_and_saveexec_b64 s[30:31], vcc")
        e("ds_write_b32 v35, v%d offset:%d" % (src, ldsoff))
        e("s_mov_b64 exec, s[30:31]")
        e("s_waitcnt lgkmcnt(0)"); e("s_barrier")
        e("v_lshlrev_b32 v35, 6, v44")
        for i in range(4): e("ds_read_b128 v[%d:%d], v35 offset:%d" % (8 + 4 * i, 11 + 4 * i, ldsoff + 16 * i))
        e("s_waitcnt lgkmcnt(0)")
        for i in range(0, 16, 2): e("v_add_f32 v%d, v%d, v%d" % (8 + i, 8 + i, 9 + i))
        for i in range(0, 16, 4): e("v_add_f32 v%d, v%d, v%d" % (8 + i, 8 + i, 10 + i))
        e("v_add_f32 v8, v8, v12"); e("v_add_f32 v16, v16, v20"); e("v_add_f32 v%d, v8, v16" % src)
    e("v_add_f32 v32, v52, v53")
    for d in range(2, 8): e("v_add_f32 v32, v32, v%d" % (52 + d))
    reduce(32, 4096)
    e("v_mul_f32 v32, 0x3a800000, v32")
    e("v_sub_f32 v40, v52, v32"); e("v_mul_f32 v41, v40, v40")
    for d in range(1, 8):
        e("v_sub_f32 v40, v%d, v32" % (52 + d)); e("v_fmac_f32 v41, v40, v40")
    reduce(41, 4096 + 512)
    e("v_mul_f32 v41, 0x3a800000, v41")
    round_pair(q, 40, 32, 41, 32, 41)
    e("v_add_f32 v41, 0x3727c5ac, v41")
    round_pair(q, 40, 41, 41, 41)
    e("v_sqrt_f32 v41, v41")
    round_pair(q, 40, 41, 41, 41)
    e("v_rcp_f32 v41, v41")
    for d in range(8): e("v_sub_f32 v%d, v%d, v32" % (52 + d, 52 + d))
    for d in range(0, 8, 2): round_pair(q, 40 if d % 4 == 0 else 42, 52 + d, 53 + d, 52 + d, 53 + d)
    for d in range(8): e("v_mul_f32 v%d, v%d, v41" % (52 + d, 52 + d))
    for d in range(0, 8, 2): round_pair(q, 40 if d % 4 == 0 else 42, 52 + d, 53 + d, 52 + d, 53 + d)
    e("v_lshlrev_b32 v5, 5, v45")
    e("ds_read_b128 v[8:11], v5 offset:8192"); e("ds_read_b128 v[12:15], v5 offset:8208")
    e("ds_read_b128 v[24:27], v5 offset:12288"); e("ds_read_b128 v[28:31], v5 offset:12304")
    e("s_waitcnt lgkmcnt(0)")
    for d in range(8): e("v_mul_f32 v%d, v%d, v%d" % (52 + d, 52 + d, 24 + d))
    for d in range(0, 8, 2): round_pair(q, 42 if d % 4 == 0 else 43, 52 + d, 53 + d, 52 + d, 53 + d)
    for d in range(8): e("v_add_f32 v%d, v%d, v%d" % (52 + d, 52 + d, 8 + d))
    for d in range(0, 8, 2): e("v_cvt_pk_bf16_f32 v%d, v%d, v%d" % (48 + d // 2, 52 + d, 53 + d))
    e("v_lshrrev_b32 v5, 5, v46"); e("v_lshlrev_b32 v5, 16, v5"); e("v_lshl_add_u32 v5, v45, 9, v5")
    e("v_and_b32 v6, 31, v46"); e("v_lshl_add_u32 v5, v6, 4, v5")
    e("buffer_store_dwordx4 v[48:51], v5, s[32:35], 0 offen %s" % opts.get("hstfl", "sc1"))
    stamp_end(q, opts, 1, 8)
    q.label("%s_done" % L); e("s_endpgm")
    return finish(name, render(q), 128, 100, 128)
```

```python
import sys
sys.path.insert(0, "gen")
from common import *
import k_small

TOP = open("adaLN_cond__mha_block_cached__swiglu_ffn__prompt.s.ref").read().split("; Override launch")[0]

def assemble(launches, kernels):
    t = TOP
    for (name, grid, block, lds) in launches:
        t += "; @launch kernel=%s grid=(%d,1,1) block=(%d,1,1) lds=%d\n" % (name, grid, block, lds)
    t += '.amdgcn_target "amdgcn-amd-amdhsa--gfx950"\n.text\n'
    for k in kernels: t += k
    return t

def full(opts=None):
    opts = opts or {}
    if opts.get("fusepre", 1):
        launches = [("gemv_kernel", 256, 1024, 4096), ("ln1_kernel", 256, 1024, 16384)]
        kernels = [k_small.k_gemv("gemv_kernel", opts), k_small.k_ln1("ln1_kernel", opts)]
    else:
        launches = [("mod_kernel", 192, 1024, 8192), ("ln1_kernel", 256, 512, 512)]
        kernels = [k_small.k_mod("mod_kernel", opts), k_small.k_ln("ln1_kernel", False, opts)]
    try:
        import k_attn
        launches.append(("attn_kernel", 256, 256, 131072)); kernels.append(k_attn.k_attn("attn_kernel", opts))
    except ImportError: pass
    try:
        import k_gemm
        launches.append(("oproj_kernel", 256, 256, 65536)); kernels.append(k_gemm.k_n64("oproj_kernel", False, opts))
        launches.append(("ln2_kernel", 256, 512, 512)); kernels.append(k_small.k_ln("ln2_kernel", True, opts))
        launches.append(("gu_kernel", 256, 256, 114688)); kernels.append(k_gemm.k_gu("gu_kernel", opts))
        launches.append(("down_kernel", 256, 256, 65536)); kernels.append(k_gemm.k_n64("down_kernel", True, opts))
    except ImportError: pass
    if opts.get("nop_start") or opts.get("nop_mid"):
        kernels.append(header("nop_kernel") + "    s_endpgm\n" + desc("nop_kernel", 8, 16, 8))
        n0 = opts.get("nop_start", 0); n1 = opts.get("nop_mid", 0)
        idx = [i for i, l in enumerate(launches) if l[0] == "attn_kernel"][0]
        launches = [("nop_kernel", 256, 64, 0)] * n0 + launches[:idx + 1] + [("nop_kernel", 256, 64, 0)] * n1 + launches[idx + 1:]
    return assemble(launches, kernels)

if __name__ == "__main__":
    out = sys.argv[1] if len(sys.argv) > 1 else "full.s"
    opts = {}
    for a_ in sys.argv[2:]:
        k, _, val = a_.partition("=")
        opts[k] = int(val) if val.lstrip("-").isdigit() else val
    open(out, "w").write(full(opts))
    print("wrote", out)
```
